```python
import torch

def _softmax(x, axis=-1):
    return torch.softmax(x, dim=axis)
def _gelu(x):
    return torch.nn.functional.gelu(x, approximate="tanh")
def _silu(x):
    return torch.nn.functional.silu(x)
def _sigmoid(x):
    return torch.sigmoid(x)
def _layernorm(x, axis=-1, eps=1e-5):
    m = x.mean(dim=axis, keepdim=True)
    v = x.var(dim=axis, keepdim=True, unbiased=False)
    return (x - m) / torch.sqrt(v + eps)
def _scatter_add(tgt, idx, src, axis=0):
    return tgt.clone().index_add_(axis, idx, src)
def _segment_sum(src, seg, n):
    out = torch.zeros((n,) + src.shape[1:], dtype=src.dtype)
    return out.index_add_(0, seg, src)
def _pad(x, pw):
    flat = tuple(v for pair in reversed(pw) for v in pair)
    return torch.nn.functional.pad(x, flat)

kernel_name = 'parallel_sum__softmax_full_mha__dense_activation_squared_relu__prompt'

def setup_inputs():

    _w = (lambda a: (lambda t: t.to(torch.bfloat16) if t.is_floating_point() else t)(torch.as_tensor(a)))
    def _A_setup():
        B, S, D = 1, 2048, 512
        return {
            "x": _w((lambda *s: torch.randn(*s, dtype=torch.bfloat16) * 0.05)(B, S, D)),
            "wqkv": _w((lambda *s: torch.randn(*s, dtype=torch.bfloat16) * 0.2)(D, 3 * D)),
            "wo": _w((lambda *s: torch.randn(*s, dtype=torch.bfloat16) * 0.1)(D, D)),
        }
    _A_in = _A_setup()

    def _B_setup():
        B, S, D, F = 1, 2048, 512, 1792
        return {
            "x": _w((lambda *s: torch.randn(*s, dtype=torch.bfloat16) * 0.05)(B, S, D)),
            "w1": _w((lambda *s: torch.randn(*s, dtype=torch.bfloat16) * 0.1)(D, F)),
            "b1": _w((lambda *s: torch.randn(*s, dtype=torch.bfloat16) * 0.8)(F)),
            "w2": _w((lambda *s: torch.randn(*s, dtype=torch.bfloat16) * 0.1)(F, D)),
            "b2": _w((lambda *s: torch.randn(*s, dtype=torch.bfloat16) * 12.8)(D)),
        }
    _B_in = _B_setup()

    return {
        "A_x": _A_in["x"],
        "A_wqkv": _A_in["wqkv"],
        "A_wo": _A_in["wo"],
        "B_x": _B_in["x"],
        "B_w1": _B_in["w1"],
        "B_b1": _B_in["b1"],
        "B_w2": _B_in["w2"],
        "B_b2": _B_in["b2"],
    }

def reference(A_x, A_wqkv, A_wo, B_x, B_w1, B_b1, B_w2, B_b2):
    def _A_ref(x, wqkv, wo):
        B, S, D = x.shape
        H = 32; Dh = D // H
        qkv = (lambda x, *d: x.permute(*d))((x @ wqkv).reshape(B, S, 3, H, Dh), 2, 0, 3, 1, 4)
        q, k, v = qkv[0], qkv[1], qkv[2]
        scale = Dh ** -0.5
        scores = torch.einsum("bhqd,bhkd->bhqk", q, k) * scale
        p = _softmax(scores, axis=-1)
        o = torch.einsum("bhqk,bhkd->bhqd", p, v)
        return (lambda x, *d: x.permute(*d))(o, 0, 2, 1, 3).reshape(B, S, D) @ wo

    def _B_ref(x, w1, b1, w2, b2):
        h = torch.einsum("bsd,df->bsf", x, w1) + b1
        zero = torch.zeros_like(h)
        r = torch.where(h > zero, h, zero)
        h = r * r
        out = torch.einsum("bsf,fd->bsd", h, w2) + b2
        return out

    x = A_x
    xn = _layernorm(x, axis=-1)
    return x + _A_ref(xn, A_wqkv, A_wo) + _B_ref(xn, B_w1, B_b1, B_w2, B_b2)
```

```python
class Asm:
    def __init__(self):
        self.lines = []
        self.uid = 0
    def __call__(self, s=""):
        for l in s.split("\n"):
            l = l.strip()
            if l: self.lines.append("    " + l)
    def label(self, name):
        self.lines.append(name + ":")
    def raw(self, s):
        self.lines.append(s)
    def comment(self, s):
        self.lines.append("    ; " + s)
    def new(self, prefix):
        self.uid += 1
        return f"{prefix}_{self.uid}"
    def text(self):
        return "\n".join(self.lines) + "\n"

def v(i, n=1):
    return f"v{i}" if n == 1 else f"v[{i}:{i+n-1}]"
def a(i, n=1):
    return f"a{i}" if n == 1 else f"a[{i}:{i+n-1}]"
def s(i, n=1):
    return f"s{i}" if n == 1 else f"s[{i}:{i+n-1}]"

def srd(A, sreg, base_lo, base_hi, off, size):
    if off:
        A(f"s_add_u32 s{sreg}, s{base_lo}, {off}")
        A(f"s_addc_u32 s{sreg+1}, s{base_hi}, 0")
    else:
        A(f"s_mov_b32 s{sreg}, s{base_lo}")
        A(f"s_mov_b32 s{sreg+1}, s{base_hi}")
    A(f"s_mov_b32 s{sreg+2}, {size}")
    A(f"s_mov_b32 s{sreg+3}, 0x20000")

def kernel_header(A, name):
    A.raw(".p2align 8")
    A.raw(f".globl {name}")
    A.raw(f".type {name},@function")
    A.label(name)

def kernel_desc(name, nvgpr, accum, nsgpr=102):
    return f""".section .rodata,"a"
.p2align 6
.amdhsa_kernel {name}
  .amdhsa_next_free_vgpr {nvgpr}
  .amdhsa_next_free_sgpr {nsgpr}
  .amdhsa_accum_offset {accum}
  .amdhsa_group_segment_fixed_size 0
  .amdhsa_kernarg_size 88
  .amdhsa_user_sgpr_count 2
  .amdhsa_user_sgpr_kernarg_segment_ptr 1
  .amdhsa_system_sgpr_workgroup_id_x 1
  .amdhsa_float_denorm_mode_32 3
.end_amdhsa_kernel
"""
WS_Q = 0
WS_K = 2 << 20
WS_V = 4 << 20
WS_ACT = 8 << 20
ACT_TILE = 144 * 1024
ACT_SIZE = 64 * ACT_TILE
WS_Y = 20 << 20
KA_X, KA_WQKV, KA_WO, KA_BX, KA_W1, KA_B1, KA_W2, KA_B2, KA_OUT, KA_DBG, KA_WS = [8*i for i in range(11)]
```

```python
from asm import *
from k2b import Prof, fbits, mfma
import math

BUFSZ = 45056
OFF_P = [16384, 24576, 32768]
OFF_S = 40960
LDS_CS = 3 * BUFSZ
LDS_ST = LDS_CS + 4096
LDS_RD = LDS_ST + 2048
LDS_TOTAL = LDS_RD + 512
QSCALE = 0.25 * math.log2(math.e)

def gen_k1(A, name="proj_kernel", prof=False, var=""):
    kernel_header(A, name)
    SRD_X, SRD_WQ, SRD_W1, SRD_P1, SRD_WS, SRD_B1 = 16, 20, 24, 28, 32, 36
    sW, sTG, sNG, sC, sRB = 40, 41, 42, 43, 44
    sXo0, sXo1, sPo, sSo = 45, 46, [47, 48, 49], 50
    sLx, sLp, sLs = 51, 54, 55
    sColP = [56, 57, 58]; sColS = 59
    vT = [1, 2, 3, 4, 5, 6, 7]
    vXd = [8, 9]; vWq, vW1, vP1, vWs = 10, 11, 12, 13
    vXr = [14, 15, 16, 17]
    vWr = [[18, 19, 20, 21], [22, 23, 24, 25]]
    vSr = [26, 27, 28, 29]
    XF = [32, 36]
    WF = [[40, 44, 48, 52], [56, 60, 64, 68]]
    ACC = [72, 88, 104, 120]
    vCS = [136, 137, 138, 139]
    vS1, vS2 = [140, 141], [142, 143]
    vOnes = 144
    AP, BP = 148, 152
    RD = 156
    PK = 172
    vLane16 = 180
    NV = 184
    pr = Prof(A, prof)
    A("s_cmp_ge_u32 s2, 256")
    A(f"s_cbranch_scc1 {name}_end")
    pr.begin()
    A(f"s_load_dwordx4 s[4:7], s[0:1], {KA_X}")
    A(f"s_load_dwordx4 s[8:11], s[0:1], {KA_W1}")
    A(f"s_load_dwordx2 s[12:13], s[0:1], {KA_WS}")
    A(f"v_lshrrev_b32 v{vT[0]}, 6, v0")
    A("v_and_b32 v0, 63, v0")
    A(f"v_readfirstlane_b32 s{sW}, v{vT[0]}")
    A("s_and_b32 s3, s2, 7")
    A("s_lshr_b32 s14, s2, 3")
    A(f"s_and_b32 s{sRB}, s3, 1")
    A(f"s_lshl_b32 s{sRB}, s{sRB}, 3")
    A("s_and_b32 s15, s14, 7")
    A(f"s_add_u32 s{sRB}, s{sRB}, s15")
    A(f"s_lshr_b32 s{sC}, s3, 1")
    A(f"s_lshl_b32 s{sC}, s{sC}, 2")
    A("s_lshr_b32 s15, s14, 3")
    A(f"s_add_u32 s{sC}, s{sC}, s15")
    A(f"s_and_b32 s{sTG}, s{sW}, 3")
    A(f"s_lshr_b32 s{sNG}, s{sW}, 2")
    l = 0
    A(f"v_lshrrev_b32 v{vT[0]}, 3, v0")
    A(f"v_and_b32 v{vT[1]}, 7, v0")
    A(f"v_lshrrev_b32 v{vT[2]}, 4, v0")
    A(f"v_xor_b32 v{vT[3]}, v{vT[1]}, v{vT[2]}")
    A(f"v_lshlrev_b32 v{vT[3]}, 4, v{vT[3]}")
    A(f"v_lshl_add_u32 v{vXd[0]}, v{vT[0]}, 10, v{vT[3]}")
    A(f"v_xor_b32 v{vXd[1]}, 64, v{vXd[0]}")
    A(f"v_and_b32 v{vT[3]}, 1, v{vT[2]}")
    A(f"v_lshlrev_b32 v{vT[3]}, 2, v{vT[3]}")
    A(f"v_xor_b32 v{vT[3]}, v{vT[1]}, v{vT[3]}")
    A(f"v_lshlrev_b32 v{vT[3]}, 4, v{vT[3]}")
    A(f"v_mul_u32_u24 v{vWq}, 3072, v{vT[0]}")
    A(f"v_add_u32 v{vWq}, v{vWq}, v{vT[3]}")
    A(f"v_mul_u32_u24 v{vW1}, 3584, v{vT[0]}")
    A(f"v_add_u32 v{vW1}, v{vW1}, v{vT[3]}")
    A(f"v_lshrrev_b32 v{vT[0]}, 2, v0")
    A(f"v_mul_u32_u24 v{vWs}, 3584, v{vT[0]}")
    A(f"v_and_b32 v{vT[1]}, 3, v0")
    A(f"v_lshl_add_u32 v{vWs}, v{vT[1]}, 4, v{vWs}")
    A(f"s_lshl_b32 s{sColP[0]}, s{sC}, 6")
    A(f"s_cmp_lt_u32 s{sC}, 8")
    A(f"s_cselect_b32 s14, 1024, 0")
    A(f"s_add_u32 s{sColP[1]}, s{sColP[0]}, s14")
    A(f"s_cmp_lt_u32 s{sC}, 8")
    A(f"s_cselect_b32 s14, 0, 512")
    A(f"s_add_u32 s{sColP[2]}, s{sColP[0]}, s14")
    A(f"s_lshl_b32 s{sColS}, s{sC}, 5")
    A(f"s_add_u32 s{sColS}, s{sColS}, {1536 - 256}")
    A(f"s_mul_i32 s14, s{sW}, {8*3072}")
    A(f"s_lshl_b32 s15, s{sColP[0]}, 1")
    A(f"s_add_u32 s{sPo[0]}, s14, s15")
    A(f"s_mul_i32 s15, s{sW}, {8*3584}")
    A(f"s_cmp_lt_u32 s{sC}, 8")
    A(f"s_cselect_b32 s3, s14, s15")
    A(f"s_lshl_b32 s14, s{sColP[1]}, 1")
    A(f"s_add_u32 s{sPo[1]}, s3, s14")
    A(f"s_lshl_b32 s14, s{sColP[2]}, 1")
    A(f"s_add_u32 s{sPo[2]}, s15, s14")
    A(f"s_sub_u32 s14, s{sW}, 4")
    A(f"s_mul_i32 s14, s14, {16*3584}")
    A(f"s_lshl_b32 s15, s{sColS}, 1")
    A(f"s_add_u32 s{sSo}, s14, s15")
    A(f"s_lshl_b32 s{sXo0}, s{sW}, 14")
    A(f"s_add_u32 s{sXo1}, s{sXo0}, 8192")
    A(f"s_lshl_b32 s{sLx}, s{sW}, 11")
    A(f"s_lshl_b32 s{sLp}, s{sW}, 10")
    A(f"s_sub_u32 s{sLs}, s{sW}, 4")
    A(f"s_lshl_b32 s{sLs}, s{sLs}, 10")
    A("s_waitcnt lgkmcnt(0)")
    pr.stamp()
    A(f"s_lshl_b32 s14, s{sRB}, 17")
    A("s_add_u32 s4, s4, s14")
    A("s_addc_u32 s5, s5, 0")
    srd(A, SRD_X, 4, 5, 0, 128*1024)
    srd(A, SRD_WQ, 6, 7, 0, 512*3072)
    srd(A, SRD_W1, 8, 9, 0, 512*3584)
    A(f"s_cmp_lt_u32 s{sC}, 8")
    for k in range(2):
        A(f"s_cselect_b32 s{SRD_P1+k}, s{SRD_WQ+k}, s{SRD_W1+k}")
    A(f"s_cselect_b32 s{SRD_P1+2}, s{SRD_WQ+2}, s{SRD_W1+2}")
    A(f"s_mov_b32 s{SRD_P1+3}, 0x20000")
    A(f"s_mov_b32 s14, {64*3584}")
    A(f"s_cselect_b32 s53, {64*3072}, s14")
    A("s_cselect_b64 vcc, -1, 0")
    A(f"v_cndmask_b32 v{vP1}, v{vW1}, v{vWq}, vcc")

    def dma(st, single):
        b = (st % 3) * BUFSZ
        for e, so in ((0, sXo0), (1, sXo1)):
            A(f"s_add_u32 m0, s{sLx}, {b + e*1024}")
            A("s_nop 0")
            A(f"buffer_load_dwordx4 v{vXd[e]}, s[{SRD_X}:{SRD_X+3}], s{so} offen lds")
            A(f"s_add_u32 s{so}, s{so}, 128")
        for p, (vreg, sr, step) in enumerate(((vWq, SRD_WQ, str(64*3072)), (vP1, SRD_P1, "s53"), (vW1, SRD_W1, str(64*3584)))):
            A(f"s_add_u32 m0, s{sLp}, {b + OFF_P[p]}")
            A("s_nop 0")
            A(f"buffer_load_dwordx4 v{vreg}, s[{sr}:{sr+3}], s{sPo[p]} offen lds")
            A(f"s_add_u32 s{sPo[p]}, s{sPo[p]}, {step}")
        if single:
            A(f"s_add_u32 m0, s{sLs}, {b + OFF_S}")
            A("s_nop 0")
            A(f"buffer_load_dwordx4 v{vWs}, s[{SRD_W1}:{SRD_W1+3}], s{sSo} offen lds")
            A(f"s_add_u32 s{sSo}, s{sSo}, {64*3584}")

    def read_addrs():
        A(f"v_and_b32 v{vT[0]}, 31, v0")
        A(f"s_lshl_b32 s14, s{sTG}, 5")
        A(f"v_add_u32 v{vT[0]}, s14, v{vT[0]}")
        A(f"v_lshrrev_b32 v{vT[1]}, 1, v{vT[0]}")
        A(f"v_and_b32 v{vT[1]}, 7, v{vT[1]}")
        A(f"v_lshrrev_b32 v{vT[2]}, 5, v0")
        A(f"v_xor_b32 v{vT[1]}, v{vT[1]}, v{vT[2]}")
        A(f"v_lshlrev_b32 v{vT[1]}, 4, v{vT[1]}")
        A(f"v_lshl_add_u32 v{vT[1]}, v{vT[0]}, 7, v{vT[1]}")
        A(f"v_and_b32 v{vT[0]}, 15, v0")
        A(f"v_lshrrev_b32 v{vT[0]}, 2, v{vT[0]}")
        A(f"v_lshl_add_u32 v{vT[3]}, v{vT[2]}, 3, v{vT[0]}")
        A(f"v_lshrrev_b32 v{vT[4]}, 4, v0")
        A(f"v_and_b32 v{vT[4]}, 1, v{vT[4]}")
        A(f"v_lshlrev_b32 v{vT[4]}, 5, v{vT[4]}")
        A(f"v_and_b32 v{vT[5]}, 3, v0")
        A(f"v_lshl_add_u32 v{vT[4]}, v{vT[5]}, 3, v{vT[4]}")
        A(f"v_lshrrev_b32 v{vT[0]}, 1, v{vT[0]}")
        A(f"v_lshlrev_b32 v{vT[0]}, 6, v{vT[0]}")
        A(f"v_lshl_add_u32 v{vT[5]}, v{vT[3]}, 7, v{vT[4]}")
        A(f"v_add_u32 v{vT[5]}, v{vT[5]}, v{vT[0]}")
        A(f"v_lshl_add_u32 v{vT[6]}, v{vT[3]}, 6, v{vT[4]}")
        for j in range(4):
            A(f"s_add_u32 s14, s{sTG}, {j}")
            A("s_and_b32 s14, s14, 3")
            A("s_lshl_b32 s15, s14, 5")
            A(f"v_xor_b32 v{vXr[j]}, s15, v{vT[1]}")
            A("s_lshl_b32 s15, s14, 11")
            A(f"v_add_u32 v{vWr[0][j]}, s15, v{vT[5]}")
            A(f"v_xor_b32 v{vWr[1][j]}, 64, v{vWr[0][j]}")
            A("s_lshl_b32 s15, s14, 10")
            A(f"v_add_u32 v{vSr[j]}, s15, v{vT[6]}")

    def advance_addrs(delta, tiles):
        regs = vXr + vWr[0] + vWr[1] + (vSr if any(t[0] == 'S' for t in tiles) else [])
        for r in regs:
            A(f"v_add_u32 v{r}, {delta & 0xffffffff:#x}, v{r}")

    def reads(j, buf, tiles):
        if 'noread' in var: return
        A(f"ds_read_b128 v[{XF[buf]}:{XF[buf]+3}], v{vXr[j]}")
        for t, (kind, p, u) in enumerate(tiles):
            d = WF[buf][t]
            for tt in range(2):
                if kind == 'S':
                    A(f"ds_read_b64_tr_b16 v[{d+2*tt}:{d+2*tt+1}], v{vSr[j]} offset:{OFF_S + tt*256}")
                else:
                    A(f"ds_read_b64_tr_b16 v[{d+2*tt}:{d+2*tt+1}], v{vWr[u][j]} offset:{OFF_P[p] + tt*512}")

    def compute(j, buf, tiles, swap, stats):
        x = XF[buf]
        extra = []
        if stats:
            for r in range(4):
                extra.append(f"v_dot2_f32_bf16 v{vS1[r&1]}, v{x+r}, v{vOnes}, v{vS1[r&1]}")
                extra.append(f"v_dot2_f32_bf16 v{vS2[r&1]}, v{x+r}, v{x+r}, v{vS2[r&1]}")
        if j == 0:
            for r in range(4):
                for t in range(len(tiles)):
                    extra.append(f"v_dot2_f32_bf16 v{vCS[t]}, v{WF[buf][t]+r}, v{vOnes}, v{vCS[t]}")
        if 'nodot' in var: extra = []
        per = -(-len(extra) // len(tiles))
        for t in range(len(tiles)):
            w = WF[buf][t]
            if swap[t]: mfma(A, ACC[t], x, w, ACC[t])
            else:       mfma(A, ACC[t], w, x, ACC[t])
            for e in extra[t*per:(t+1)*per]: A(e)

    def path(label, tiles, swap, kinds, stats, ndma, single):
        A.label(label)
        pr.n = n_common
        nread = 1 + 2*len(tiles)
        for st in range(3): dma(st, single)
        read_addrs()
        A(f"v_mov_b32 v{vOnes}, 0x3f803f80")
        for t in range(len(tiles)):
            A(f"v_mov_b32 v{vCS[t]}, 0")
            for r in range(16): A(f"v_mov_b32 v{ACC[t]+r}, 0")
        for r in vS1 + vS2: A(f"v_mov_b32 v{r}, 0")
        nb = 0
        for t, k in enumerate(kinds):
            if k[0] == 'H':
                if nb == 0:
                    srd(A, SRD_B1, 10, 11, 0, 3584)
                    A(f"v_and_b32 v{vT[0]}, 31, v0")
                    A(f"v_lshlrev_b32 v{vT[0]}, 1, v{vT[0]}")
                col = k[1]
                A(f"s_lshl_b32 s14, s{col[0]}, 1")
                A(f"buffer_load_ushort v{RD+t}, v{vT[0]}, s[{SRD_B1}:{SRD_B1+3}], s14 offen offset:{col[1]*2}")
                nb += 1
        pr.stamp()
        A(f"s_waitcnt vmcnt({2*ndma + nb})")
        A("s_barrier")
        pr.stamp()
        reads(0, 0, tiles)
        buf = 0
        for st in range(8):
            for j in range(4):
                if j < 3:
                    reads(j+1, buf ^ 1, tiles)
                    A(f"s_waitcnt lgkmcnt({nread})")
                    compute(j, buf, tiles, swap, stats)
                else:
                    A("s_waitcnt lgkmcnt(0)")
                    if st < 7:
                        n_out = ndma if st < 6 else 0
                        if 'nodma' in var: n_out = 0
                        if st < 2: n_out = ndma + nb
                        A(f"s_waitcnt vmcnt({n_out})")
                        A("s_barrier")
                        if st + 3 < 8 and 'nodma' not in var: dma(st + 3, single)
                        advance_addrs(((st+1) % 3 - st % 3) * BUFSZ, tiles)
                        reads(0, buf ^ 1, tiles)
                    compute(j, buf, tiles, swap, stats)
                buf ^= 1
        pr.stamp()
        lo32 = "s[60:61]"
        A("s_mov_b32 s60, -1"); A("s_mov_b32 s61, 0")
        A("s_nop 2")
        for t in range(len(tiles)):
            A(f"v_mov_b32 v{vT[0]}, v{vCS[t]}")
            A("s_nop 1")
            A(f"v_permlane32_swap_b32 v{vCS[t]}, v{vT[0]}")
            A("s_nop 1")
            A(f"v_add_f32 v{vCS[t]}, v{vCS[t]}, v{vT[0]}")
        slot0 = 0 if not stats else 4
        A(f"v_and_b32 v{vT[1]}, 31, v0")
        A(f"v_lshlrev_b32 v{vT[1]}, 4, v{vT[1]}")
        A(f"s_lshl_b32 s14, s{sTG}, 2")
        A(f"v_add_u32 v{vT[2]}, s14, v{vT[1]}")
        A(f"v_add_u32 v{vT[2]}, {LDS_CS:#x}, v{vT[2]}")
        for t in range(len(tiles)):
            A(f"ds_write_b32 v{vT[2]}, v{vCS[t]} offset:{(slot0+t)*512}")
        if stats:
            A(f"v_add_f32 v{vS1[0]}, v{vS1[0]}, v{vS1[1]}")
            A(f"v_add_f32 v{vS2[0]}, v{vS2[0]}, v{vS2[1]}")
            for r in (vS1[0], vS2[0]):
                A(f"v_mov_b32 v{vT[0]}, v{r}")
                A("s_nop 1")
                A(f"v_permlane32_swap_b32 v{r}, v{vT[0]}")
                A("s_nop 1")
                A(f"v_add_f32 v{r}, v{r}, v{vT[0]}")
            m, q = vS1[0], vS2[0]
            A(f"v_mul_f32 v{m}, {fbits(1/512)}, v{m}")
            A(f"v_mul_f32 v{q}, {fbits(1/512)}, v{q}")
            A(f"v_fma_f32 v{q}, -v{m}, v{m}, v{q}")
            A(f"v_max_f32 v{q}, 0, v{q}")
            A(f"v_cvt_pk_bf16_f32 v{vT[3]}, v{q}, v{q}")
            A(f"v_and_b32 v{vT[3]}, 0xffff0000, v{vT[3]}")
            A(f"v_add_f32 v{vT[3]}, {fbits(1e-5)}, v{vT[3]}")
            A(f"v_cvt_pk_bf16_f32 v{vT[3]}, v{vT[3]}, v{vT[3]}")
            A(f"v_and_b32 v{vT[3]}, 0xffff0000, v{vT[3]}")
            A(f"v_sqrt_f32 v{vT[3]}, v{vT[3]}")
            A(f"v_sub_f32 v{m}, 0, v{m}")
            A(f"v_cvt_pk_bf16_f32 v{PK+1}, v{vT[3]}, 0")
            A(f"v_cvt_pk_bf16_f32 v{PK}, v{m}, v{m}")
            A(f"v_lshlrev_b32 v{vT[3]}, 16, v{PK+1}")
            A(f"v_rcp_f32 v{PK+2}, v{vT[3]}")
            A(f"v_mov_b32 v{PK+3}, 0")
            A(f"v_and_b32 v{vT[4]}, 31, v0")
            A(f"s_lshl_b32 s14, s{sTG}, 5")
            A(f"v_add_u32 v{vT[4]}, s14, v{vT[4]}")
            A(f"v_lshlrev_b32 v{vT[5]}, 4, v{vT[4]}")
            A(f"v_add_u32 v{vT[5]}, {LDS_ST:#x}, v{vT[5]}")
            A(f"ds_write_b128 v{vT[5]}, v[{PK}:{PK+3}]")
            A(f"v_lshlrev_b32 v{vT[5]}, 2, v{vT[4]}")
            A(f"v_add_u32 v{vT[5]}, {LDS_RD:#x}, v{vT[5]}")
            A(f"ds_write_b32 v{vT[5]}, v{PK+2}")
        A("s_waitcnt lgkmcnt(0)")
        A("s_barrier")
        A(f"v_and_b32 v{vT[4]}, 31, v0")
        A(f"s_lshl_b32 s14, s{sTG}, 5")
        A(f"v_add_u32 v{vT[4]}, s14, v{vT[4]}")
        A(f"v_lshlrev_b32 v{vT[5]}, 4, v{vT[4]}")
        A(f"v_add_u32 v{vT[5]}, {LDS_ST:#x}, v{vT[5]}")
        A(f"ds_read_b128 v[{BP}:{BP+3}], v{vT[5]}")
        A(f"v_add_u32 v{vT[1]}, {LDS_CS:#x}, v{vT[1]}")
        for t in range(len(tiles)):
            A(f"ds_read_b128 v[{WF[0][t]}:{WF[0][t]+3}], v{vT[1]} offset:{(slot0+t)*512}")
        hasV = any(k[0] == 'V' for k in kinds)
        if hasV:
            A(f"v_lshrrev_b32 v{vT[2]}, 5, v0")
            A(f"v_lshlrev_b32 v{vT[2]}, 4, v{vT[2]}")
            A(f"s_lshl_b32 s14, s{sTG}, 7")
            A(f"v_add_u32 v{vT[2]}, s14, v{vT[2]}")
            A(f"v_add_u32 v{vT[2]}, {LDS_RD:#x}, v{vT[2]}")
            for g in range(4):
                A(f"ds_read_b128 v[{XF[0] if False else RD+4*g}:{RD+4*g+3}], v{vT[2]} offset:{g*32}")
        A("s_waitcnt lgkmcnt(0)")
        vRd = vT[6]
        A(f"v_mov_b32 v{vRd}, v{BP+2}")
        A(f"v_mov_b32 v{BP+2}, 0")
        A(f"v_mov_b32 v{BP+3}, 0")
        A(f"v_mov_b32 v{AP+2}, 0")
        A(f"v_mov_b32 v{AP+3}, 0")
        for t, k in enumerate(kinds):
            w = WF[0][t]
            A(f"v_add_f32 v{w}, v{w}, v{w+1}")
            A(f"v_add_f32 v{w+2}, v{w+2}, v{w+3}")
            A(f"v_add_f32 v{w}, v{w}, v{w+2}")
            A(f"v_cvt_pk_bf16_f32 v{w+1}, v{w}, v{w}")
            A(f"v_lshlrev_b32 v{w+1}, 16, v{w+1}")
            A(f"v_sub_f32 v{w+1}, v{w}, v{w+1}")
            A(f"v_cvt_pk_bf16_f32 v{w}, v{w}, v{w+1}")
            A(f"v_cndmask_b32 v{AP}, 0, v{w}, {lo32}")
            if k[0] == 'H':
                A(f"v_cndmask_b32 v{AP+1}, 0, v{RD+t}, {lo32}")
            else:
                A(f"v_mov_b32 v{AP+1}, 0")
            A("s_nop 1")
            if swap[t]: mfma(A, ACC[t], BP, AP, ACC[t])
            else:       mfma(A, ACC[t], AP, BP, ACC[t])
            A("s_nop 3")
        A("s_nop 7"); A("s_nop 3")
        pr.stamp()
        A(f"v_lshlrev_b32 v{vLane16}, 4, v0")
        A(f"s_lshl_b32 s14, s{sRB}, 2")
        A(f"s_add_u32 s14, s14, s{sTG}")
        for t, k in enumerate(kinds):
            acc = ACC[t]
            if k[0] in 'QK':
                if k[0] == 'Q':
                    A(f"v_mul_f32 v{vT[0]}, {fbits(QSCALE)}, v{vRd}")
                    sc = vT[0]
                else:
                    sc = vRd
                u = tiles[t][2]
                for h in range(2):
                    for r in range(8):
                        A(f"v_mul_f32 v{acc+8*h+r}, v{acc+8*h+r}, v{sc}")
                    for j in range(4):
                        A(f"v_cvt_pk_bf16_f32 v{PK+4*h+j}, v{acc+8*h+2*j}, v{acc+8*h+2*j+1}")
                    A(f"s_lshr_b32 s15, s{sColP[0]}, 4")
                    A(f"s_add_u32 s15, s15, {2*u + h}")
                    A("s_lshl_b32 s15, s15, 16")
                    A("s_lshl_b32 s3, s14, 10")
                    A("s_add_u32 s15, s15, s3")
                    A(f"buffer_store_dwordx4 v[{PK+4*h}:{PK+4*h+3}], v{vLane16}, s[{SRD_WS}:{SRD_WS+3}], s15 offen")
            elif k[0] == 'V':
                u = tiles[t][2]
                for r in range(16):
                    A(f"v_mul_f32 v{acc+r}, v{acc+r}, v{RD+r}")
                A(f"v_and_b32 v{vT[0]}, 15, v0")
                A(f"v_lshlrev_b32 v{vT[0]}, 4, v{vT[0]}")
                A(f"v_lshrrev_b32 v{vT[1]}, 5, v0")
                A(f"v_lshl_add_u32 v{vT[0]}, v{vT[1]}, 8, v{vT[0]}")
                A(f"v_bfe_u32 v{vT[1]}, v0, 4, 1")
                A(f"v_lshl_add_u32 v{vT[0]}, v{vT[1]}, 16, v{vT[0]}")
                A(f"s_lshr_b32 s15, s{sColP[1]}, 4")
                A(f"s_add_u32 s15, s15, {2*u}")
                A("s_lshl_b32 s15, s15, 16")
                A("s_lshl_b32 s3, s14, 10")
                A("s_add_u32 s15, s15, s3")
                for h in range(2):
                    for j in range(4):
                        A(f"v_cvt_pk_bf16_f32 v{PK+4*h+j}, v{acc+8*h+2*j}, v{acc+8*h+2*j+1}")
                    A(f"buffer_store_dwordx4 v[{PK+4*h}:{PK+4*h+3}], v{vT[0]}, s[{SRD_WS}:{SRD_WS+3}], s15 offen offset:{h*512}")
            else:
                col = k[1]
                for r in range(16):
                    A(f"v_mul_f32 v{acc+r}, v{acc+r}, v{vRd}")
                for r in range(16):
                    A(f"v_max_f32 v{acc+r}, 0, v{acc+r}")
                for r in range(16):
                    A(f"v_mul_f32 v{acc+r}, v{acc+r}, v{acc+r}")
                A(f"s_mul_i32 s15, s14, {ACT_TILE}")
                A(f"s_lshr_b32 s3, s{col[0]}, 4")
                A(f"s_add_u32 s3, s3, {32 + col[1]//16}")
                A("s_lshl_b32 s3, s3, 10")
                A("s_add_u32 s15, s15, s3")
                A(f"s_add_u32 s15, s15, {WS_ACT}")
                for h in range(2):
                    for j in range(4):
                        A(f"v_cvt_pk_bf16_f32 v{PK+4*h+j}, v{acc+8*h+2*j}, v{acc+8*h+2*j+1}")
                    A(f"buffer_store_dwordx4 v[{PK+4*h}:{PK+4*h+3}], v{vLane16}, s[{SRD_WS}:{SRD_WS+3}], s15 offen offset:{h*1024}")
            A("s_nop 1")
        A(f"s_branch {name}_fin")

    srd(A, SRD_WS, 12, 13, 0, WS_ACT + ACT_SIZE)
    A(f"s_cmp_lt_u32 s{sC}, 8")
    A(f"s_cbranch_scc1 {name}_typeV")
    A(f"s_cmp_eq_u32 s{sNG}, 0")
    A(f"s_cbranch_scc1 {name}_H0")
    A(f"s_branch {name}_H1")
    A.label(f"{name}_typeV")
    A(f"s_cmp_eq_u32 s{sNG}, 0")
    A(f"s_cbranch_scc1 {name}_V0")
    A(f"s_branch {name}_V1")
    P = lambda p, u: ('P', p, u)
    n_common = pr.n
    path(f"{name}_V0", [P(0,0), P(0,1), P(1,0), P(1,1)], [0,0,1,1], [('Q',), ('Q',), ('V',), ('V',)], False, 5, False)
    path(f"{name}_V1", [P(2,0), P(2,1)], [0,0], [('H', (sColP[2], 0)), ('H', (sColP[2], 32))], True, 5, False)
    path(f"{name}_H0", [P(0,0), P(0,1), P(1,0), P(1,1)], [0,0,0,0], [('K',), ('K',), ('H', (sColP[1], 0)), ('H', (sColP[1], 32))], False, 5, False)
    path(f"{name}_H1", [P(2,0), P(2,1), ('S', 0, 0)], [0,0,0], [('H', (sColP[2], 0)), ('H', (sColP[2], 32)), ('H', (sColS, 0))], True, 6, True)
    A.label(f"{name}_fin")
    pr.finish(12, 13, sW, vT[0], vT[1], 31 << 20)
    A.label(f"{name}_end")
    A("s_endpgm")
    return dict(name=name, nv=NV, accum=NV, lds=LDS_TOTAL, block=512, grid=256)
```

```python
from asm import *

BIAS = 64.0

def gen_k2(A, name="attn_kernel", prof=False, var=""):
    kernel_header(A, name)
    vK, vV = 1, 2
    vT0, vT1, vT2 = 3, 4, 5
    Q = 8
    KB = [12, 16]
    VB = [20, 28]
    P = 36
    S = [44, 60]
    O = 76
    M = 92
    vM = 108
    NV = 112
    sW = 20
    sH, sQB = 21, 22
    SRD_Q, SRD_K, SRD_V, SRD_O = 24, 28, 32, 36
    sMaskV = 40
    A(f"s_cmp_ge_u32 s2, 256")
    A(f"s_cbranch_scc1 {name}_end")
    nst = [0]
    def stamp():
        if prof:
            A(f"s_memtime s[{64+2*nst[0]}:{65+2*nst[0]}]")
            A("s_waitcnt lgkmcnt(0)")
            nst[0] += 1
    if prof:
        A("s_memrealtime s[52:53]")
    stamp()
    A(f"s_load_dwordx2 s[4:5], s[0:1], {KA_WS}")
    A(f"v_lshrrev_b32 v{vT0}, 6, v0")
    A(f"v_and_b32 v0, 63, v0")
    A(f"v_readfirstlane_b32 s{sW}, v{vT0}")
    A(f"s_and_b32 s{sH}, s2, 7")
    A(f"s_lshl_b32 s{sH}, s{sH}, 2")
    A(f"s_bfe_u32 s3, s2, 0x20003")
    A(f"s_add_u32 s{sH}, s{sH}, s3")
    A(f"s_lshr_b32 s{sQB}, s2, 5")
    A(f"v_lshlrev_b32 v{vK}, 4, v0")
    A("s_waitcnt lgkmcnt(0)")
    stamp()
    A(f"s_lshl_b32 s6, s{sH}, 16")
    A(f"s_add_u32 s8, s4, s6")
    A(f"s_addc_u32 s9, s5, 0")
    srd(A, SRD_K, 8, 9, WS_K, 65536)
    srd(A, SRD_V, 8, 9, WS_V, 65536)
    srd(A, SRD_Q, 8, 9, WS_Q, 65536)
    srd(A, SRD_O, 4, 5, WS_ACT, ACT_SIZE)
    A(f"s_lshl_b32 s10, s{sW}, 10")
    for j in range(8):
        A(f"s_add_u32 s11, s10, {j*8192}")
        A(f"s_mov_b32 m0, s11")
        A(f"s_add_u32 s12, s11, 65536")
        A(f"buffer_load_dwordx4 v{vK}, s[{SRD_K}:{SRD_K+3}], s11 offen lds")
        A(f"s_mov_b32 m0, s12")
        A("s_nop 0")
        A(f"buffer_load_dwordx4 v{vK}, s[{SRD_V}:{SRD_V+3}], s11 offen lds")
        if j == 0:
            A(f"s_lshl_b32 s23, s{sQB}, 3")
            A(f"s_add_u32 s23, s23, s{sW}")
            A(f"s_lshl_b32 s14, s23, 10")
            A(f"buffer_load_dwordx4 v[{Q}:{Q+3}], v{vK}, s[{SRD_Q}:{SRD_Q+3}], s14 offen")
            A("s_barrier")
            stamp()
    A(f"v_lshrrev_b32 v{vT0}, 5, v0")
    A(f"v_lshlrev_b32 v{vT0}, 8, v{vT0}")
    A(f"v_and_b32 v{vT1}, 15, v0")
    A(f"v_lshlrev_b32 v{vT1}, 4, v{vT1}")
    A(f"v_add_u32 v{vV}, v{vT0}, v{vT1}")
    A(f"v_add_u32 v{vV}, 0x10000, v{vV}")
    A(f"s_mov_b32 s{sMaskV}, 0x0000ffff")
    A(f"s_mov_b32 s{sMaskV+1}, 0x0000ffff")
    for b in VB:
        for r in range(8):
            A(f"v_mov_b32 v{b+r}, 0x3f803f80")
    A("s_waitcnt vmcnt(14)")
    A("s_barrier")
    stamp()
    blocks = [S[0], S[1], O, M]
    for t in range(2):
        A(f"ds_read_b128 v[{KB[t]}:{KB[t]+3}], v{vK} offset:{t*1024}")
    A(f"ds_read_b128 v[{P}:{P+3}], v{vK} offset:{2*1024}")
    A(f"ds_read_b128 v[{P+4}:{P+7}], v{vK} offset:{3*1024}")
    srcs = [KB[0], KB[1], P, P+4]
    for t in range(4):
        A(f"s_waitcnt lgkmcnt({3-t})")
        A(f"v_mfma_f32_32x32x16_bf16 v[{blocks[t]}:{blocks[t]+15}], v[{srcs[t]}:{srcs[t]+3}], v[{Q}:{Q+3}], 0")
    A("s_nop 7")
    A("s_nop 7")
    def maxtree(dst, regs):
        A(f"v_max3_f32 v{dst}, v{regs[0]}, v{regs[1]}, v{regs[2]}")
        i = 3
        while i + 1 < len(regs):
            A(f"v_max3_f32 v{dst}, v{dst}, v{regs[i]}, v{regs[i+1]}")
            i += 2
        if i < len(regs):
            A(f"v_max_f32 v{dst}, v{dst}, v{regs[i]}")
    maxtree(vT0, [blocks[0]+r for r in range(16)] + [blocks[1]+r for r in range(16)])
    A("s_nop 3")
    maxtree(vT1, [blocks[2]+r for r in range(16)] + [blocks[3]+r for r in range(16)])
    A(f"v_max_f32 v{vT0}, v{vT0}, v{vT1}")
    A(f"v_mov_b32 v{vT1}, v{vT0}")
    A("s_nop 1")
    A(f"v_permlane32_swap_b32 v{vT0}, v{vT1}")
    A("s_nop 1")
    A(f"v_max_f32 v{vT0}, v{vT0}, v{vT1}")
    A(f"s_mov_b32 s10, {float_bits(-BIAS)}")
    A(f"v_sub_f32 v{vT0}, s10, v{vT0}")
    for r in range(16):
        A(f"v_mov_b32 v{M+r}, v{vT0}")
    for r in range(16):
        A(f"v_mov_b32 v{O+r}, 0")
    A(f"s_mov_b64 exec, s[{sMaskV}:{sMaskV+1}]")
    A(f"ds_read_b128 v[{VB[0]}:{VB[0]+3}], v{vV} offset:0")
    A(f"ds_read_b128 v[{VB[0]+4}:{VB[0]+7}], v{vV} offset:512")
    A("s_mov_b64 exec, -1")
    A(f"v_mfma_f32_32x32x16_bf16 v[{S[0]}:{S[0]+15}], v[{KB[0]}:{KB[0]+3}], v[{Q}:{Q+3}], v[{M}:{M+15}]")
    A("s_nop 7")
    A("s_nop 7")

    def tile(i, off, last=False, reads=True, first=False):
        cur, nxt = S[i & 1], S[(i + 1) & 1]
        kb_next = KB[(i + 1) & 1]
        kb_free = KB[i & 1]
        vb = VB[i & 1]
        vb_free = VB[(i + 1) & 1]
        ex = lambda r: A(f"v_exp_f32 v{cur+r}, v{cur+r}")
        cv = lambda j: A(f"v_cvt_pk_bf16_f32 v{P+j}, v{cur+2*j}, v{cur+2*j+1}")
        def rdK():
            if reads[0] and 'noread' not in var:
                A(f"ds_read_b128 v[{kb_free}:{kb_free+3}], v{vK} offset:{off+2048}")
        def rdV():
            if reads[1] and 'noread' not in var:
                if 'noexec' not in var: A(f"s_mov_b64 exec, s[{sMaskV}:{sMaskV+1}]")
                A(f"ds_read_b128 v[{vb_free}:{vb_free+3}], v{vV} offset:{off+1024}")
                A(f"ds_read_b128 v[{vb_free+4}:{vb_free+7}], v{vV} offset:{off+1024+512}")
                if 'noexec' not in var: A("s_mov_b64 exec, -1")
        def qk():
            if not last:
                A(f"v_mfma_f32_32x32x16_bf16 v[{nxt}:{nxt+15}], v[{kb_next}:{kb_next+3}], v[{Q}:{Q+3}], v[{M}:{M+15}]")
        pva = lambda: A(f"v_mfma_f32_32x32x16_bf16 v[{O}:{O+15}], v[{vb}:{vb+3}], v[{P}:{P+3}], v[{O}:{O+15}]")
        if 'old' in var:
            A("s_waitcnt lgkmcnt(0)")
            qk()
            ex(0); ex(1); rdK(); ex(2); cv(0); ex(3); rdV()
            ex(4); cv(1); ex(5); ex(6); cv(2); ex(7); ex(8); cv(3); ex(9); ex(10)
            pva()
            cv(4); ex(11); ex(12); cv(5); ex(13); ex(14); cv(6); ex(15)
            A("s_nop 0")
            cv(7)
            A("s_nop 1")
            A(f"v_mfma_f32_32x32x16_bf16 v[{O}:{O+15}], v[{vb+4}:{vb+7}], v[{P+4}:{P+7}], v[{O}:{O+15}]")
            return
        def pvb_prev():
            if not first:
                A(f"v_mfma_f32_32x32x16_bf16 v[{O}:{O+15}], v[{vb_free+4}:{vb_free+7}], v[{P+4}:{P+7}], v[{O}:{O+15}]")
        def c7_prev():
            if not first:
                A(f"v_cvt_pk_bf16_f32 v{P+7}, v{nxt+14}, v{nxt+15}")
        if 'sp1' in var:
            ex(0); c7_prev(); ex(1)
            if 'noread' not in var: A("s_waitcnt lgkmcnt(0)")
            qk()
            ex(2); cv(0); rdK(); ex(3); ex(4); cv(1)
            pvb_prev()
            ex(5); ex(6); cv(2); rdV(); ex(7); ex(8); cv(3); ex(9); ex(10)
            pva()
            cv(4); ex(11); ex(12); cv(5); ex(13); ex(14); cv(6); ex(15)
        else:
            ex(0); c7_prev(); ex(1)
            if 'noread' not in var: A("s_waitcnt lgkmcnt(0)")
            qk()
            ex(2)
            pvb_prev()
            cv(0); ex(3); rdK(); ex(4); cv(1); ex(5); ex(6); cv(2); ex(7)
            rdV()
            ex(8); cv(3); ex(9); ex(10)
            pva()
            cv(4); ex(11); ex(12); cv(5); ex(13); ex(14); cv(6); ex(15)
        if last:
            A("s_nop 0")
            A(f"v_cvt_pk_bf16_f32 v{P+7}, v{cur+14}, v{cur+15}")
            A("s_nop 1")
            A(f"v_mfma_f32_32x32x16_bf16 v[{O}:{O+15}], v[{vb+4}:{vb+7}], v[{P+4}:{P+7}], v[{O}:{O+15}]")

    if 'prio' in var:
        A(f"s_cmp_ge_u32 s{sW}, 4")
        A(f"s_cbranch_scc0 {name}_noprio")
        A("s_setprio 1")
        A.label(f"{name}_noprio")
    for i in range(6):
        tile(i, i*1024, reads=(True, True), first=(i == 0))
    A("s_waitcnt vmcnt(0)")
    A("s_barrier")
    for i in range(6, 8):
        tile(i, i*1024, reads=(True, True))
    A(f"v_add_u32 v{vK}, 0x2000, v{vK}")
    A(f"v_add_u32 v{vV}, 0x2000, v{vV}")
    A("s_mov_b32 s10, 6")
    L = f"{name}_loop"
    A.raw(".p2align 6")
    A.label(L)
    for i in range(8):
        tile(i, i*1024, reads=(True, True))
    A(f"v_add_u32 v{vK}, 0x2000, v{vK}")
    A(f"v_add_u32 v{vV}, 0x2000, v{vV}")
    A("s_sub_u32 s10, s10, 1")
    A("s_cmp_lg_u32 s10, 0")
    A(f"s_cbranch_scc1 {L}")
    for i in range(8):
        tile(i, i*1024, last=(i == 7), reads=(i < 6, i < 7))
    stamp()
    A("s_nop 7")
    A("s_nop 7")
    A(f"s_mov_b32 s10, {float_bits(2.0**120)}")
    A(f"v_cmp_lt_f32 s[12:13], v{O+8}, s10")
    A(f"v_max3_f32 v{vT0}, |v{O}|, |v{O+1}|, |v{O+2}|")
    A(f"v_max3_f32 v{vT0}, v{vT0}, |v{O+3}|, |v{O+4}|")
    A(f"v_max3_f32 v{vT0}, v{vT0}, |v{O+5}|, |v{O+6}|")
    A(f"v_max_f32 v{vT0}, v{vT0}, |v{O+7}|")
    A(f"s_mov_b32 s10, {float_bits(2.0**-100)}")
    A(f"v_cmp_gt_f32 s[14:15], v{vT0}, s10")
    A("s_and_b64 s[12:13], s[12:13], s[14:15]")
    A("s_mov_b32 s10, 0x1f8")
    for r in range(8):
        A(f"v_cmp_class_f32 s[14:15], v{O+r}, s10")
        A("s_nop 0")
        A("s_and_b64 s[12:13], s[12:13], s[14:15]")
    A("s_cmp_eq_u64 s[12:13], -1")
    if 'nocheck' in var:
        A(f"s_branch {name}_fin")
    A(f"s_cbranch_scc1 {name}_fin")
    A(f"v_lshlrev_b32 v{vK}, 4, v0")
    A(f"v_add_u32 v{vV}, 0xFFFF0000, v{vV}")
    A(f"v_add_u32 v{vV}, 0x2000, v{vV}")
    for r in range(16):
        A(f"v_mov_b32 v{O+r}, 0")
    A(f"v_mov_b32 v{vM}, 0xff800000")
    A("s_mov_b32 s10, 64")
    LF = f"{name}_fb"
    A.label(LF)
    A(f"ds_read_b128 v[{KB[0]}:{KB[0]+3}], v{vK}")
    A(f"s_mov_b64 exec, s[{sMaskV}:{sMaskV+1}]")
    A(f"ds_read_b128 v[{VB[0]}:{VB[0]+3}], v{vV} offset:0")
    A(f"ds_read_b128 v[{VB[0]+4}:{VB[0]+7}], v{vV} offset:512")
    A("s_mov_b64 exec, -1")
    A("s_waitcnt lgkmcnt(0)")
    cur = S[0]
    A(f"v_mfma_f32_32x32x16_bf16 v[{cur}:{cur+15}], v[{KB[0]}:{KB[0]+3}], v[{Q}:{Q+3}], 0")
    A("s_nop 7")
    A("s_nop 7")
    maxtree(vT0, [cur+r for r in range(16)])
    A(f"v_mov_b32 v{vT1}, v{vT0}")
    A("s_nop 1")
    A(f"v_permlane32_swap_b32 v{vT0}, v{vT1}")
    A("s_nop 1")
    A(f"v_max3_f32 v{vT0}, v{vT0}, v{vT1}, v{vM}")
    A(f"v_sub_f32 v{vT1}, v{vM}, v{vT0}")
    A(f"v_exp_f32 v{vT1}, v{vT1}")
    A(f"v_mov_b32 v{vM}, v{vT0}")
    for r in range(9):
        A(f"v_mul_f32 v{O+r}, v{O+r}, v{vT1}")
    for r in range(16):
        A(f"v_sub_f32 v{cur+r}, v{cur+r}, v{vM}")
    for r in range(16):
        A(f"v_exp_f32 v{cur+r}, v{cur+r}")
    A("s_nop 0")
    for j in range(8):
        A(f"v_cvt_pk_bf16_f32 v{P+j}, v{cur+2*j}, v{cur+2*j+1}")
    A("s_nop 1")
    A(f"v_mfma_f32_32x32x16_bf16 v[{O}:{O+15}], v[{VB[0]}:{VB[0]+3}], v[{P}:{P+3}], v[{O}:{O+15}]")
    A(f"v_mfma_f32_32x32x16_bf16 v[{O}:{O+15}], v[{VB[0]+4}:{VB[0]+7}], v[{P+4}:{P+7}], v[{O}:{O+15}]")
    A(f"v_add_u32 v{vK}, 0x400, v{vK}")
    A(f"v_add_u32 v{vV}, 0x400, v{vV}")
    A("s_nop 7")
    A("s_nop 7")
    A("s_sub_u32 s10, s10, 1")
    A("s_cmp_lg_u32 s10, 0")
    A(f"s_cbranch_scc1 {LF}")
    A.label(f"{name}_fin")
    A(f"v_rcp_f32 v{vT0}, v{O+8}")
    A("s_nop 0")
    for r in range(8):
        A(f"v_mul_f32 v{O+r}, v{O+r}, v{vT0}")
    for j in range(4):
        A(f"v_cvt_pk_bf16_f32 v{P+j}, v{O+2*j}, v{O+2*j+1}")
    A(f"s_mul_i32 s10, s23, {ACT_TILE}")
    A(f"s_lshl_b32 s11, s{sH}, 10")
    A(f"s_add_u32 s10, s10, s11")
    A(f"v_lshlrev_b32 v{vT1}, 4, v0")
    A(f"buffer_store_dwordx4 v[{P}:{P+3}], v{vT1}, s[{SRD_O}:{SRD_O+3}], s10 offen")
    stamp()
    if prof:
        A("s_memrealtime s[62:63]")
        A("s_waitcnt lgkmcnt(0)")
        srd(A, 44, 4, 5, 30 << 20, 1 << 20)
        A("s_lshl_b32 s10, s2, 3")
        A(f"s_add_u32 s10, s10, s{sW}")
        A("s_lshl_b32 s10, s10, 6")
        for k in range(1, nst[0]):
            A(f"s_sub_u32 s11, s{64+2*k}, s64")
            A(f"v_mov_b32 v{vT0}, s11")
            A(f"v_mov_b32 v{vT1}, {4*k}")
            A(f"buffer_store_dword v{vT0}, v{vT1}, s[44:47], s10 offen")
        A(f"v_mov_b32 v{vT0}, s52")
        A(f"v_mov_b32 v{vT1}, 56")
        A(f"buffer_store_dword v{vT0}, v{vT1}, s[44:47], s10 offen")
        A(f"v_mov_b32 v{vT0}, s62")
        A(f"v_mov_b32 v{vT1}, 60")
        A(f"buffer_store_dword v{vT0}, v{vT1}, s[44:47], s10 offen")
    A.label(f"{name}_end")
    A("s_endpgm")
    return dict(name=name, nv=NV, accum=NV, lds=131072 + 0, block=512, grid=256)

import struct
def float_bits(f):
    return hex(struct.unpack('<I', struct.pack('<f', f))[0])
```

```python
from asm import *
import struct
def fbits(f): return hex(struct.unpack('<I', struct.pack('<f', f))[0])

BIAS = 90.0

class Prof:
    def __init__(self, A, on, base=64):
        self.A, self.on, self.n, self.base = A, on, 0, base
    def stamp(self):
        if self.on:
            b = self.base + 2*self.n
            self.A(f"s_memtime s[{b}:{b+1}]"); self.A("s_waitcnt lgkmcnt(0)"); self.n += 1
    def begin(self):
        if self.on: self.A("s_memrealtime s[52:53]")
        self.stamp()
    def finish(self, ws_lo, ws_hi, sW, vt0, vt1, region):
        if not self.on: return
        A = self.A
        self.stamp()
        A("s_memrealtime s[62:63]"); A("s_waitcnt lgkmcnt(0)")
        srd(A, 44, ws_lo, ws_hi, region, 1 << 20)
        A("s_lshl_b32 s10, s2, 3"); A(f"s_add_u32 s10, s10, s{sW}"); A("s_lshl_b32 s10, s10, 6")
        for k in range(1, self.n):
            A(f"s_sub_u32 s11, s{self.base+2*k}, s{self.base}")
            A(f"v_mov_b32 v{vt0}, s11"); A(f"v_mov_b32 v{vt1}, {4*k}")
            A(f"buffer_store_dword v{vt0}, v{vt1}, s[44:47], s10 offen")
        for reg, o in ((52, 56), (62, 60)):
            A(f"v_mov_b32 v{vt0}, s{reg}"); A(f"v_mov_b32 v{vt1}, {o}")
            A(f"buffer_store_dword v{vt0}, v{vt1}, s[44:47], s10 offen")

def maxtree(A, dst, regs):
    A(f"v_max3_f32 v{dst}, v{regs[0]}, v{regs[1]}, v{regs[2]}")
    i = 3
    while i + 1 < len(regs):
        A(f"v_max3_f32 v{dst}, v{dst}, v{regs[i]}, v{regs[i+1]}"); i += 2
    if i < len(regs):
        A(f"v_max_f32 v{dst}, v{dst}, v{regs[i]}")

def mfma(A, d, a_, b_, c):
    cs = "0" if c is None else f"v[{c}:{c+15}]"
    A(f"v_mfma_f32_32x32x16_bf16 v[{d}:{d+15}], v[{a_}:{a_+3}], v[{b_}:{b_+3}], {cs}")

def gen_k2(A, name="attn_kernel", prof=False, var=""):
    kernel_header(A, name)
    vK, vV, vT0, vT1, vT2, vM = 1, 2, 3, 4, 5, 6
    Q = [8, 12]; KB = [16, 20]; VB = [24, 32]; P = 40
    S = [48, 64]; O = [80, 96]; M = [112, 128]
    NV = 144
    sW, sH, sQB, sTT, sKH = 20, 21, 22, 23, 16
    SRD_Q, SRD_K, SRD_V, SRD_O = 24, 28, 32, 36
    sMaskV = 40
    LDS_V, LDS_X = 65536, 131072
    pr = Prof(A, prof)
    A("s_cmp_ge_u32 s2, 256")
    A(f"s_cbranch_scc1 {name}_end")
    pr.begin()
    A(f"s_load_dwordx2 s[4:5], s[0:1], {KA_WS}")
    A(f"v_lshrrev_b32 v{vT0}, 6, v0")
    A("v_and_b32 v0, 63, v0")
    A(f"v_readfirstlane_b32 s{sW}, v{vT0}")
    A(f"s_and_b32 s{sH}, s2, 7")
    A(f"s_lshl_b32 s{sH}, s{sH}, 2")
    A("s_bfe_u32 s3, s2, 0x20003")
    A(f"s_add_u32 s{sH}, s{sH}, s3")
    A(f"s_lshr_b32 s{sQB}, s2, 5")
    A(f"v_lshlrev_b32 v{vK}, 4, v0")
    A(f"s_lshr_b32 s{sKH}, s{sW}, 2")
    A(f"s_and_b32 s17, s{sW}, 3")
    A(f"s_lshl_b32 s10, s{sKH}, 5")
    A("s_add_u32 s10, s10, s17")
    A("s_lshl_b32 s10, s10, 10")
    A(f"s_lshl_b32 s{sTT}, s{sQB}, 3")
    A("s_lshl_b32 s18, s17, 1")
    A(f"s_add_u32 s{sTT}, s{sTT}, s18")
    A(f"s_lshl_b32 s14, s{sTT}, 10")
    A(f"s_lshl_b32 s6, s{sH}, 16")
    A("s_waitcnt lgkmcnt(0)")
    pr.stamp()
    A("s_add_u32 s8, s4, s6")
    A("s_addc_u32 s9, s5, 0")
    srd(A, SRD_K, 8, 9, WS_K, 65536)
    srd(A, SRD_V, 8, 9, WS_V, 65536)
    srd(A, SRD_Q, 8, 9, WS_Q, 65536)
    for c in range(8):
        A(f"s_add_u32 s11, s10, {c*4096}")
        A("s_mov_b32 m0, s11")
        A(f"s_add_u32 s12, s11, {LDS_V}")
        A(f"buffer_load_dwordx4 v{vK}, s[{SRD_K}:{SRD_K+3}], s11 offen lds")
        if c == 0:
            A(f"buffer_load_dwordx4 v[{Q[0]}:{Q[0]+3}], v{vK}, s[{SRD_Q}:{SRD_Q+3}], s14 offen")
            A(f"buffer_load_dwordx4 v[{Q[1]}:{Q[1]+3}], v{vK}, s[{SRD_Q}:{SRD_Q+3}], s14 offen offset:1024")
        A("s_mov_b32 m0, s12")
        A("s_nop 0")
        A(f"buffer_load_dwordx4 v{vK}, s[{SRD_V}:{SRD_V+3}], s11 offen lds")
        if c == 0:
            A("s_barrier")
            pr.stamp()
    srd(A, SRD_O, 4, 5, WS_ACT, ACT_SIZE)
    A(f"v_lshrrev_b32 v{vT0}, 5, v0")
    A(f"v_lshlrev_b32 v{vT0}, 8, v{vT0}")
    A(f"v_and_b32 v{vT1}, 15, v0")
    A(f"v_lshlrev_b32 v{vT1}, 4, v{vT1}")
    A(f"v_add_u32 v{vV}, v{vT0}, v{vT1}")
    A(f"s_lshl_b32 s15, s{sKH}, 15")
    A(f"s_add_u32 s11, s15, {LDS_V}")
    A(f"v_add_u32 v{vV}, s11, v{vV}")
    A(f"s_mov_b32 s{sMaskV}, 0x0000ffff")
    A(f"s_mov_b32 s{sMaskV+1}, 0x0000ffff")
    for b in VB:
        for r in range(8):
            A(f"v_mov_b32 v{b+r}, 0x3f803f80")
    A("s_waitcnt vmcnt(14)")
    A("s_barrier")
    pr.stamp()
    A(f"ds_read_b128 v[{KB[0]}:{KB[0]+3}], v{vK} offset:0")
    A(f"ds_read_b128 v[{KB[1]}:{KB[1]+3}], v{vK} offset:1024")
    A(f"v_add_u32 v{vK}, s15, v{vK}")
    A("s_waitcnt lgkmcnt(1)")
    mfma(A, S[0], KB[0], Q[0], None)
    mfma(A, O[0], KB[0], Q[1], None)
    A("s_waitcnt lgkmcnt(0)")
    mfma(A, S[1], KB[1], Q[0], None)
    mfma(A, O[1], KB[1], Q[1], None)
    A(f"ds_read_b128 v[{KB[0]}:{KB[0]+3}], v{vK} offset:0")
    A(f"s_mov_b64 exec, s[{sMaskV}:{sMaskV+1}]")
    A(f"ds_read_b128 v[{VB[0]}:{VB[0]+3}], v{vV} offset:0")
    A(f"ds_read_b128 v[{VB[0]+4}:{VB[0]+7}], v{vV} offset:512")
    A("s_mov_b64 exec, -1")
    A("s_nop 7")
    A("s_nop 3")
    maxtree(A, vT0, [S[0]+r for r in range(16)] + [S[1]+r for r in range(16)])
    maxtree(A, vT1, [O[0]+r for r in range(16)] + [O[1]+r for r in range(16)])
    for t in (vT0, vT1):
        A(f"v_mov_b32 v{vT2}, v{t}")
        A("s_nop 1")
        A(f"v_permlane32_swap_b32 v{t}, v{vT2}")
        A("s_nop 1")
        A(f"v_max_f32 v{t}, v{t}, v{vT2}")
    A(f"s_mov_b32 s11, {fbits(-BIAS)}")
    A(f"v_sub_f32 v{vT0}, s11, v{vT0}")
    A(f"v_sub_f32 v{vT1}, s11, v{vT1}")
    for r in range(16):
        A(f"v_mov_b32 v{M[0]+r}, v{vT0}")
    A("s_waitcnt lgkmcnt(0)")
    A("s_nop 0")
    mfma(A, S[0], KB[0], Q[0], M[0])
    for r in range(16):
        A(f"v_mov_b32 v{M[1]+r}, v{vT1}")
    for q in range(2):
        for r in range(16):
            A(f"v_mov_b32 v{O[q]+r}, 0")
    pr.stamp()
    if 'prio' in var:
        A(f"s_cmp_ge_u32 s{sW}, 4")
        A(f"s_cbranch_scc0 {name}_noprio")
        A("s_setprio 1")
        A.label(f"{name}_noprio")

    def half(q, i, off, first, last, rdK, rdV):
        cur, oth = S[q], S[1-q]
        ex = lambda r: A(f"v_exp_f32 v{cur+r}, v{cur+r}")
        cv = lambda j: A(f"v_cvt_pk_bf16_f32 v{P+j}, v{cur+2*j}, v{cur+2*j+1}")
        vb = VB[i & 1]
        pvb = VB[i & 1] if q == 1 else VB[(i-1) & 1]
        ex(0)
        if not first: A(f"v_cvt_pk_bf16_f32 v{P+7}, v{oth+14}, v{oth+15}")
        ex(1)
        if q == 0:
            mfma(A, S[1], KB[i & 1], Q[1], M[1])
        elif not last:
            if 'nowait' not in var: A("s_waitcnt lgkmcnt(0)")
            mfma(A, S[0], KB[(i+1) & 1], Q[0], M[0])
        ex(2); cv(0)
        if q == 0 and rdK and 'noread' not in var:
            A(f"ds_read_b128 v[{KB[(i+1)&1]}:{KB[(i+1)&1]+3}], v{vK} offset:{off+1024}")
        ex(3); ex(4); cv(1)
        if not first: mfma(A, O[1-q], pvb+4, P+4, O[1-q])
        ex(5); ex(6); cv(2)
        if q == 1 and rdV and 'noread' not in var:
            vf = VB[(i+1) & 1]
            if 'noexec' not in var: A(f"s_mov_b64 exec, s[{sMaskV}:{sMaskV+1}]")
            A(f"ds_read_b128 v[{vf}:{vf+3}], v{vV} offset:{off+1024}")
            A(f"ds_read_b128 v[{vf+4}:{vf+7}], v{vV} offset:{off+1024+512}")
            if 'noexec' not in var: A("s_mov_b64 exec, -1")
        ex(7); ex(8); cv(3); ex(9)
        if q == 0 and 'nowait' not in var: A(f"s_waitcnt lgkmcnt({1 if rdK else 0})")
        ex(10)
        mfma(A, O[q], vb, P, O[q])
        cv(4); ex(11); ex(12); cv(5); ex(13); ex(14); cv(6); ex(15)
        if q == 1 and last:
            A("s_nop 0")
            A(f"v_cvt_pk_bf16_f32 v{P+7}, v{cur+14}, v{cur+15}")
            A("s_nop 1")
            mfma(A, O[1], vb+4, P+4, O[1])
    def it(i, off, first=False, last=False):
        half(0, i, off, first, False, not last, not last)
        half(1, i, off, False, last, not last, not last)

    it(0, 0, first=True)
    it(1, 1024)
    A("s_waitcnt vmcnt(0)")
    A("s_barrier")
    for i in range(2, 8):
        it(i, i*1024)
    A(f"v_add_u32 v{vK}, 0x2000, v{vK}")
    A(f"v_add_u32 v{vV}, 0x2000, v{vV}")
    A("s_mov_b32 s10, 2")
    L = f"{name}_loop"
    A.raw(".p2align 6")
    A.label(L)
    for i in range(8):
        it(i, i*1024)
    A(f"v_add_u32 v{vK}, 0x2000, v{vK}")
    A(f"v_add_u32 v{vV}, 0x2000, v{vV}")
    A("s_sub_u32 s10, s10, 1")
    A("s_cmp_lg_u32 s10, 0")
    A(f"s_cbranch_scc1 {L}")
    for i in range(8):
        it(i, i*1024, last=(i == 7))
    pr.stamp()
    A("s_nop 7")
    A("s_nop 3")
    A(f"s_lshl_b32 s11, s17, 1")
    A(f"s_xor_b32 s12, s{sKH}, 1")
    A("s_add_u32 s12, s11, s12")
    A(f"s_mul_i32 s12, s12, {9*256}")
    A(f"s_add_u32 s12, s12, {LDS_X}")
    A(f"s_add_u32 s13, s11, s{sKH}")
    A(f"s_mul_i32 s13, s13, {9*256}")
    A(f"s_add_u32 s13, s13, {LDS_X}")
    A(f"v_lshlrev_b32 v{vT2}, 2, v0")
    A(f"v_add_u32 v{vT0}, s12, v{vT2}")
    A(f"v_add_u32 v{vT1}, s13, v{vT2}")
    A(f"s_cmp_eq_u32 s{sKH}, 0")
    A(f"s_cbranch_scc1 {name}_k0")
    for r in range(9):
        A(f"ds_write_b32 v{vT0}, v{O[0]+r} offset:{r*256}")
    for r in range(9):
        A(f"v_mov_b32 v{O[0]+r}, v{O[1]+r}")
    for r in range(4):
        A(f"v_mov_b32 v{Q[0]+r}, v{Q[1]+r}")
    A(f"s_branch {name}_k1")
    A.label(f"{name}_k0")
    for r in range(9):
        A(f"ds_write_b32 v{vT0}, v{O[1]+r} offset:{r*256}")
    A.label(f"{name}_k1")
    A("s_waitcnt lgkmcnt(0)")
    A("s_barrier")
    for r in range(9):
        A(f"ds_read_b32 v{S[0]+r}, v{vT1} offset:{r*256}")
    A("s_waitcnt lgkmcnt(0)")
    OO = O[0]
    for r in range(9):
        A(f"v_add_f32 v{OO+r}, v{OO+r}, v{S[0]+r}")
    A(f"s_mov_b32 s10, {fbits(2.0**120)}")
    A(f"v_cmp_lt_f32 s[12:13], v{OO+8}, s10")
    A(f"v_max3_f32 v{vT0}, |v{OO}|, |v{OO+1}|, |v{OO+2}|")
    A(f"v_max3_f32 v{vT0}, v{vT0}, |v{OO+3}|, |v{OO+4}|")
    A(f"v_max3_f32 v{vT0}, v{vT0}, |v{OO+5}|, |v{OO+6}|")
    A(f"v_max_f32 v{vT0}, v{vT0}, |v{OO+7}|")
    A(f"s_mov_b32 s10, {fbits(2.0**-102)}")
    A(f"v_cmp_gt_f32 s[14:15], v{vT0}, s10")
    A("s_and_b64 s[12:13], s[12:13], s[14:15]")
    A("s_mov_b32 s10, 0x1f8")
    for r in range(8):
        A(f"v_cmp_class_f32 s[14:15], v{OO+r}, s10")
        A("s_nop 0")
        A("s_and_b64 s[12:13], s[12:13], s[14:15]")
    A("s_cmp_eq_u64 s[12:13], -1")
    if 'nocheck' in var: A(f"s_branch {name}_fin")
    A(f"s_cbranch_scc1 {name}_fin")
    A(f"v_lshlrev_b32 v{vK}, 4, v0")
    A(f"v_lshrrev_b32 v{vT0}, 5, v0")
    A(f"v_lshlrev_b32 v{vT0}, 8, v{vT0}")
    A(f"v_and_b32 v{vT1}, 15, v0")
    A(f"v_lshlrev_b32 v{vT1}, 4, v{vT1}")
    A(f"v_add_u32 v{vV}, v{vT0}, v{vT1}")
    A(f"v_add_u32 v{vV}, {LDS_V}, v{vV}")
    for r in range(16):
        A(f"v_mov_b32 v{OO+r}, 0")
    A(f"v_mov_b32 v{vM}, 0xff800000")
    A("s_mov_b32 s10, 64")
    LF = f"{name}_fb"
    A.label(LF)
    A(f"ds_read_b128 v[{KB[0]}:{KB[0]+3}], v{vK}")
    A(f"s_mov_b64 exec, s[{sMaskV}:{sMaskV+1}]")
    A(f"ds_read_b128 v[{VB[0]}:{VB[0]+3}], v{vV} offset:0")
    A(f"ds_read_b128 v[{VB[0]+4}:{VB[0]+7}], v{vV} offset:512")
    A("s_mov_b64 exec, -1")
    A("s_waitcnt lgkmcnt(0)")
    cur = S[0]
    mfma(A, cur, KB[0], Q[0], None)
    A("s_nop 7")
    A("s_nop 7")
    maxtree(A, vT0, [cur+r for r in range(16)])
    A(f"v_mov_b32 v{vT1}, v{vT0}")
    A("s_nop 1")
    A(f"v_permlane32_swap_b32 v{vT0}, v{vT1}")
    A("s_nop 1")
    A(f"v_max3_f32 v{vT0}, v{vT0}, v{vT1}, v{vM}")
    A(f"v_sub_f32 v{vT1}, v{vM}, v{vT0}")
    A(f"v_exp_f32 v{vT1}, v{vT1}")
    A(f"v_mov_b32 v{vM}, v{vT0}")
    for r in range(9):
        A(f"v_mul_f32 v{OO+r}, v{OO+r}, v{vT1}")
    for r in range(16):
        A(f"v_sub_f32 v{cur+r}, v{cur+r}, v{vM}")
    for r in range(16):
        A(f"v_exp_f32 v{cur+r}, v{cur+r}")
    A("s_nop 0")
    for j in range(8):
        A(f"v_cvt_pk_bf16_f32 v{P+j}, v{cur+2*j}, v{cur+2*j+1}")
    A("s_nop 1")
    mfma(A, OO, VB[0], P, OO)
    mfma(A, OO, VB[0]+4, P+4, OO)
    A(f"v_add_u32 v{vK}, 0x400, v{vK}")
    A(f"v_add_u32 v{vV}, 0x400, v{vV}")
    A("s_nop 7")
    A("s_nop 7")
    A("s_sub_u32 s10, s10, 1")
    A("s_cmp_lg_u32 s10, 0")
    A(f"s_cbranch_scc1 {LF}")
    A.label(f"{name}_fin")
    A(f"v_rcp_f32 v{vT0}, v{OO+8}")
    A(f"s_add_u32 s10, s{sTT}, s{sKH}")
    A(f"s_mul_i32 s10, s10, {ACT_TILE}")
    A(f"s_lshl_b32 s11, s{sH}, 10")
    for r in range(8):
        A(f"v_mul_f32 v{OO+r}, v{OO+r}, v{vT0}")
    A("s_add_u32 s10, s10, s11")
    for j in range(4):
        A(f"v_cvt_pk_bf16_f32 v{P+j}, v{OO+2*j}, v{OO+2*j+1}")
    A(f"v_lshlrev_b32 v{vT1}, 4, v0")
    A(f"buffer_store_dwordx4 v[{P}:{P+3}], v{vT1}, s[{SRD_O}:{SRD_O+3}], s10 offen")
    pr.finish(4, 5, sW, vT0, vT1, 30 << 20)
    A.label(f"{name}_end")
    A("s_endpgm")
    return dict(name=name, nv=NV, accum=NV, lds=131072 + 8*9*256, block=512, grid=256)
```

```python
from asm import *
from k2b import Prof, fbits, mfma

def gen_k3(A, name="out_kernel", prof=False, var="", n_wo=4, n_w2=14, depth=3):
    kernel_header(A, name)
    SRD_ACT, SRD_WO, SRD_W2, SRD_X, SRD_OUT, SRD_B2 = 16, 20, 24, 28, 32, 36
    sW, sTT, sNB = 40, 41, 42
    sA0, sA1, sWs, sRing = 43, 44, 45, 46
    vT = [1, 2, 3, 4, 5]
    vL16, vWd = 6, 7
    vWr = [8, 9]
    ACC = [16, 32, 48, 64]
    WF = [[80, 84], [88, 92]]
    AF = [[96 + 8*d, 100 + 8*d] for d in range(depth)]
    NV = 96 + 8*depth
    NV = max(NV, 128)
    pr = Prof(A, prof)
    nsteps = n_wo + n_w2
    A("s_cmp_ge_u32 s2, 256")
    A(f"s_cbranch_scc1 {name}_end")
    pr.begin()
    A(f"s_load_dwordx2 s[4:5], s[0:1], {KA_X}")
    A(f"s_load_dwordx2 s[6:7], s[0:1], {KA_WO}")
    A(f"s_load_dwordx4 s[8:11], s[0:1], {KA_W2}")
    A(f"s_load_dwordx2 s[12:13], s[0:1], {KA_OUT}")
    A(f"s_load_dwordx2 s[14:15], s[0:1], {KA_WS}")
    A(f"v_lshrrev_b32 v{vT[0]}, 6, v0")
    A("v_and_b32 v0, 63, v0")
    A(f"v_readfirstlane_b32 s{sW}, v{vT[0]}")
    A("s_and_b32 s3, s2, 7")
    A("s_lshl_b32 s3, s3, 2")
    A(f"s_bfe_u32 s{sTT}, s2, 0x20003")
    A(f"s_add_u32 s{sTT}, s{sTT}, s3")
    A(f"s_lshl_b32 s{sTT}, s{sTT}, 1")
    A(f"s_lshr_b32 s{sNB}, s2, 5")
    A(f"v_lshlrev_b32 v{vL16}, 4, v0")
    A(f"v_lshrrev_b32 v{vT[0]}, 3, v0")
    A(f"v_and_b32 v{vT[1]}, 7, v0")
    A(f"v_bfe_u32 v{vT[2]}, v0, 4, 1")
    A(f"v_lshlrev_b32 v{vT[2]}, 2, v{vT[2]}")
    A(f"v_xor_b32 v{vT[1]}, v{vT[1]}, v{vT[2]}")
    A(f"v_lshlrev_b32 v{vT[1]}, 4, v{vT[1]}")
    A(f"v_lshl_add_u32 v{vWd}, v{vT[0]}, 10, v{vT[1]}")
    A(f"s_mul_i32 s{sRing}, s{sW}, {depth*2048}")
    A(f"v_and_b32 v{vT[0]}, 15, v0")
    A(f"v_lshrrev_b32 v{vT[0]}, 2, v{vT[0]}")
    A(f"v_lshrrev_b32 v{vT[1]}, 5, v0")
    A(f"v_lshl_add_u32 v{vT[1]}, v{vT[1]}, 2, v{vT[0]}")
    A(f"v_lshlrev_b32 v{vT[1]}, 7, v{vT[1]}")
    A(f"v_lshrrev_b32 v{vT[0]}, 1, v{vT[0]}")
    A(f"v_lshl_add_u32 v{vT[1]}, v{vT[0]}, 6, v{vT[1]}")
    A(f"v_bfe_u32 v{vT[0]}, v0, 4, 1")
    A(f"v_lshl_add_u32 v{vT[1]}, v{vT[0]}, 5, v{vT[1]}")
    A(f"v_and_b32 v{vT[0]}, 3, v0")
    A(f"v_lshl_add_u32 v{vT[1]}, v{vT[0]}, 3, v{vT[1]}")
    A(f"v_add_u32 v{vWr[0]}, s{sRing}, v{vT[1]}")
    A(f"v_xor_b32 v{vWr[1]}, 64, v{vWr[0]}")
    A(f"s_mul_i32 s3, s{sTT}, {ACT_TILE}")
    A("s_waitcnt lgkmcnt(0)")
    pr.stamp()
    srd(A, SRD_ACT, 14, 15, WS_ACT, ACT_SIZE)
    srd(A, SRD_WO, 6, 7, 0, 512*1024)
    srd(A, SRD_W2, 8, 9, 0, 1792*1024)
    def setup(first):
        pass
    def src_init(kind):
        if kind == 'o':
            A(f"s_mul_i32 s{sA0}, s{sW}, {n_wo*1024}")
            A(f"s_mul_i32 s{sWs}, s{sW}, {n_wo*16*1024}")
        else:
            A(f"s_mul_i32 s{sA0}, s{sW}, {n_w2*1024}")
            A(f"s_add_u32 s{sA0}, s{sA0}, {32*1024}")
            A(f"s_mul_i32 s{sWs}, s{sW}, {n_w2*16*1024}")
        A(f"s_add_u32 s{sA0}, s{sA0}, s3")
        A(f"s_add_u32 s{sA1}, s{sA0}, {ACT_TILE}")
        A(f"s_lshl_b32 s47, s{sNB}, 7")
        A(f"s_add_u32 s{sWs}, s{sWs}, s47")
    def issue(i):
        if i == 0 and n_wo: src_init('o')
        if i == n_wo: src_init('f')
        sr = SRD_WO if i < n_wo else SRD_W2
        d = i % depth
        A(f"s_add_u32 m0, s{sRing}, {d*2048}")
        A(f"buffer_load_dwordx4 v[{AF[d][0]}:{AF[d][0]+3}], v{vL16}, s[{SRD_ACT}:{SRD_ACT+3}], s{sA0} offen")
        A(f"buffer_load_dwordx4 v{vWd}, s[{sr}:{sr+3}], s{sWs} offen lds")
        A(f"s_add_u32 m0, s{sRing}, {d*2048 + 1024}")
        A(f"s_add_u32 s{sWs}, s{sWs}, 8192")
        A(f"buffer_load_dwordx4 v[{AF[d][1]}:{AF[d][1]+3}], v{vL16}, s[{SRD_ACT}:{SRD_ACT+3}], s{sA1} offen")
        A(f"buffer_load_dwordx4 v{vWd}, s[{sr}:{sr+3}], s{sWs} offen lds")
        A(f"s_add_u32 s{sWs}, s{sWs}, 8192")
        A(f"s_add_u32 s{sA0}, s{sA0}, 1024")
        A(f"s_add_u32 s{sA1}, s{sA1}, 1024")
    def wreads(i):
        d = i % depth; b = i & 1
        for u in range(2):
            for t in range(2):
                A(f"ds_read_b64_tr_b16 v[{WF[b][u]+2*t}:{WF[b][u]+2*t+1}], v{vWr[u]} offset:{d*2048 + t*1024}")
    for i in range(min(depth, nsteps)): issue(i)
    for t in range(4):
        for r in range(16): A(f"v_mov_b32 v{ACC[t]+r}, 0")
    srd(A, SRD_X, 4, 5, 0, 2048*1024)
    srd(A, SRD_OUT, 12, 13, 0, 2048*1024)
    srd(A, SRD_B2, 10, 11, 0, 1024)
    issued = min(depth, nsteps)
    A(f"s_waitcnt vmcnt({4*(issued-1)})")
    pr.stamp()
    wreads(0)
    for i in range(nsteps):
        d = i % depth; b = i & 1
        if i + 1 < nsteps:
            out_after = issued - (i + 2)
            A(f"s_waitcnt vmcnt({4*out_after})")
            wreads(i + 1)
            A("s_waitcnt lgkmcnt(4)")
        else:
            A("s_waitcnt lgkmcnt(0)")
        for tt in range(2):
            for u in range(2):
                mfma(A, ACC[tt*2+u], WF[b][u], AF[d][tt], ACC[tt*2+u])
        if issued < nsteps:
            issue(issued); issued += 1
    pr.stamp()
    A("s_barrier")
    A(f"s_lshl_b32 s3, s{sW}, 14")
    A(f"v_add_u32 v{vT[0]}, s3, v{vL16}")
    A("s_nop 7")
    for t in range(4):
        for g in range(4):
            A(f"ds_write_b128 v{vT[0]}, v[{ACC[t]+4*g}:{ACC[t]+4*g+3}] offset:{(t*4+g)*1024}")
    A(f"s_lshr_b32 s48, s{sW}, 1")
    A(f"s_and_b32 s49, s{sW}, 1")
    A(f"s_lshr_b32 s50, s48, 1")
    A(f"s_and_b32 s51, s48, 1")
    A(f"s_add_u32 s50, s50, s{sTT}")
    A("s_lshl_b32 s50, s50, 15")
    A(f"s_lshl_b32 s52, s{sNB}, 6")
    A("s_lshl_b32 s51, s51, 5")
    A("s_add_u32 s52, s52, s51")
    A("s_lshl_b32 s51, s49, 4")
    A("s_add_u32 s52, s52, s51")
    A("s_lshl_b32 s52, s52, 1")
    A(f"v_and_b32 v{vT[1]}, 31, v0")
    A(f"v_lshlrev_b32 v{vT[1]}, 10, v{vT[1]}")
    A(f"v_lshrrev_b32 v{vT[2]}, 5, v0")
    A(f"v_lshlrev_b32 v{vT[3]}, 3, v{vT[2]}")
    A(f"v_add_u32 v{vT[4]}, v{vT[1]}, v{vT[3]}")
    A("s_add_u32 s53, s50, s52")
    XR, BR = 80, 84
    A(f"buffer_load_dwordx2 v[{XR}:{XR+1}], v{vT[4]}, s[{SRD_X}:{SRD_X+3}], s53 offen")
    A(f"buffer_load_dwordx2 v[{XR+2}:{XR+3}], v{vT[4]}, s[{SRD_X}:{SRD_X+3}], s53 offen offset:16")
    A(f"buffer_load_dwordx2 v[{BR}:{BR+1}], v{vT[3]}, s[{SRD_B2}:{SRD_B2+3}], s52 offen")
    A(f"buffer_load_dwordx2 v[{BR+2}:{BR+3}], v{vT[3]}, s[{SRD_B2}:{SRD_B2+3}], s52 offen offset:16")
    A("s_waitcnt lgkmcnt(0)")
    A("s_barrier")
    A(f"s_lshl_b32 s3, s48, 12")
    A(f"s_lshl_b32 s51, s49, 11")
    A("s_add_u32 s3, s3, s51")
    A(f"v_add_u32 v{vT[0]}, s3, v{vL16}")
    R = 16
    A(f"v_add_u32 v{vWd}, 0x10000, v{vT[0]}")
    for p in range(8):
        base = vT[0] if p < 4 else vWd
        for g in range(2):
            A(f"ds_read_b128 v[{R+(p*2+g)*4}:{R+(p*2+g)*4+3}], v{base} offset:{(p&3)*16384 + g*1024}")
    for p in range(1, 8):
        A(f"s_waitcnt lgkmcnt({14 - 2*p})")
        for r in range(8):
            A(f"v_add_f32 v{R+r}, v{R+r}, v{R+p*8+r}")
    A("s_waitcnt vmcnt(0)")
    for g in range(2):
        for j in range(2):
            for src in (XR, BR):
                reg = src + 2*g + j
                A(f"v_lshlrev_b32 v{vT[0]}, 16, v{reg}")
                A(f"v_and_b32 v{vWd}, 0xffff0000, v{reg}")
                A(f"v_add_f32 v{R+4*g+2*j}, v{R+4*g+2*j}, v{vT[0]}")
                A(f"v_add_f32 v{R+4*g+2*j+1}, v{R+4*g+2*j+1}, v{vWd}")
    PK = 88
    for j in range(4):
        A(f"v_cvt_pk_bf16_f32 v{PK+j}, v{R+2*j}, v{R+2*j+1}")
    A("s_nop 1")
    A(f"v_permlane32_swap_b32 v{PK}, v{PK+2}")
    A(f"v_permlane32_swap_b32 v{PK+1}, v{PK+3}")
    A(f"v_lshlrev_b32 v{vT[3]}, 4, v{vT[2]}")
    A(f"v_add_u32 v{vT[4]}, v{vT[1]}, v{vT[3]}")
    A(f"buffer_store_dwordx4 v[{PK}:{PK+3}], v{vT[4]}, s[{SRD_OUT}:{SRD_OUT+3}], s53 offen")
    pr.finish(14, 15, sW, vT[0], vT[1], 29 << 20)
    A.label(f"{name}_end")
    A("s_endpgm")
    return dict(name=name, nv=NV, accum=NV, lds=131072, block=512, grid=256)
```

```python
import sys
from asm import *
import k1, k2, k2b
HEADER = open('parallel_sum__softmax_full_mha__dense_activation_squared_relu__prompt.s.ref').read().split("; Override launch")[0]
def build(gens):
    A = Asm()
    infos = []
    A.raw('.amdgcn_target "amdgcn-amd-amdhsa--gfx950"')
    A.raw('.text')
    for g in gens:
        infos.append(g(A))
    body = A.text()
    desc = "".join(kernel_desc(i['name'], i['nv'], i['accum']) for i in infos)
    launches = "".join(f"; @launch kernel={i['name']} grid=({i['grid']},1,1) block=({i['block']},1,1) lds={i['lds']}\n" for i in infos)
    return HEADER + launches + body + desc, infos
if __name__ == "__main__":
    out, which = sys.argv[1], sys.argv[2]
    prof = len(sys.argv) > 3 and sys.argv[3] == 'prof'
    var = sys.argv[4] if len(sys.argv) > 4 else ""
    gens = []
    for k in which.split(','):
        if k == 'k1': gens.append(lambda A: k1.gen_k1(A, prof=prof, var=var))
        if k == 'k2': gens.append(lambda A: k2b.gen_k2(A, prof=prof, var=var))
        if k == 'k3':
            import k3
            gens.append(lambda A: k3.gen_k3(A, prof=prof, var=var))
    txt, infos = build(gens)
    open(out, 'w').write(txt)
    print(infos)
```

```python
import sys
from asm import *
import k1, k2, k2b
HEADER = open('parallel_sum__softmax_full_mha__dense_activation_squared_relu__prompt.s.ref').read().split("; Override launch")[0]
def build(gens):
    A = Asm()
    infos = []
    A.raw('.amdgcn_target "amdgcn-amd-amdhsa--gfx950"')
    A.raw('.text')
    for g in gens:
        infos.append(g(A))
    body = A.text()
    desc = "".join(kernel_desc(i['name'], i['nv'], i['accum']) for i in infos)
    launches = "".join(f"; @launch kernel={i['name']} grid=({i['grid']},1,1) block=({i['block']},1,1) lds={i['lds']}\n" for i in infos)
    return HEADER + launches + body + desc, infos
if __name__ == "__main__":
    out, which = sys.argv[1], sys.argv[2]
    prof = len(sys.argv) > 3 and sys.argv[3] == 'prof'
    var = sys.argv[4] if len(sys.argv) > 4 else ""
    gens = []
    for k in which.split(','):
        if k == 'k1': gens.append(lambda A: k1.gen_k1(A, prof=prof, var=var))
        if k == 'k2': gens.append(lambda A: k2b.gen_k2(A, prof=prof, var=var))
        if k.startswith('e'):
            def ge(A, nm=k):
                name = f"empty{nm[1:]}_kernel"
                kernel_header(A, name); A("s_endpgm")
                return dict(name=name, nv=8, accum=8, lds=0, block=64, grid=1)
            gens.append(ge)
        if k == 'k3':
            import k3
            gens.append(lambda A: k3.gen_k3(A, prof=prof, var=var))
    txt, infos = build(gens)
    open(out, 'w').write(txt)
    print(infos)
```

```python
import sys
from asm import *
import k1, k2, k2b
HEADER = open('parallel_sum__softmax_full_mha__dense_activation_squared_relu__prompt.s.ref').read().split("; Override launch")[0]
def build(gens):
    A = Asm()
    infos = []
    A.raw('.amdgcn_target "amdgcn-amd-amdhsa--gfx950"')
    A.raw('.text')
    for g in gens:
        infos.append(g(A))
    body = A.text()
    desc = "".join(kernel_desc(i['name'], i['nv'], i['accum']) for i in infos)
    launches = "".join(f"; @launch kernel={i['name']} grid=({i['grid']},1,1) block=({i['block']},1,1) lds={i['lds']}\n" for i in infos)
    return HEADER + launches + body + desc, infos
if __name__ == "__main__":
    out, which = sys.argv[1], sys.argv[2]
    prof = len(sys.argv) > 3 and sys.argv[3] == 'prof'
    var = sys.argv[4] if len(sys.argv) > 4 else ""
    gens = []
    for k in which.split(','):
        if k == 'k1': gens.append(lambda A: k1.gen_k1(A, prof=prof, var=var))
        if k == 'k2': gens.append(lambda A: k2b.gen_k2(A, prof=prof, var=var))
        if k.startswith('e'):
            def ge(A, nm=k):
                name = f"empty{nm[1:]}_kernel"
                kernel_header(A, name); A("s_endpgm")
                return dict(name=name, nv=8, accum=8, lds=0, block=64, grid=1)
            gens.append(ge)
        if k.startswith('m'):
            def gm(A, nm=k):
                name = f"mark{nm[1:]}_kernel"
                kernel_header(A, name)
                A(f"s_load_dwordx2 s[4:5], s[0:1], {KA_DBG}")
                A("s_waitcnt lgkmcnt(0)")
                srd(A, 8, 4, 5, 0, 256)
                A(f"v_mov_b32 v1, {int(nm[1:])}")
                A("v_mov_b32 v2, 0")
                A("buffer_store_dword v1, v2, s[8:11], 0 offen")
                A("s_endpgm")
                return dict(name=name, nv=8, accum=8, lds=0, block=64, grid=1)
            gens.append(gm)
        if k == 'rep':
            import report
            gens.append(lambda A: report.gen_report(A, [(31 << 20, 3, 4, 6), (30 << 20, 3, 5, 6), (29 << 20, 2, 3, 4)]))
        if k == 'k3':
            import k3
            gens.append(lambda A: k3.gen_k3(A, prof=prof, var=var))
    txt, infos = build(gens)
    open(out, 'w').write(txt)
    print(infos)
```

```python
from asm import *
def gen_report(A, specs, name="report_kernel"):
    kernel_header(A, name)
    A("s_cmp_ge_u32 s2, 1")
    A(f"s_cbranch_scc1 {name}_end")
    A(f"s_load_dwordx2 s[4:5], s[0:1], {KA_WS}")
    A(f"s_load_dwordx2 s[6:7], s[0:1], {KA_DBG}")
    A("s_waitcnt lgkmcnt(0)")
    srd(A, 12, 6, 7, 0, 256)
    A("v_lshlrev_b32 v1, 6, v0")
    outw = 0
    for k, (off, sl, sm, se) in enumerate(specs):
        srd(A, 8, 4, 5, off, 1 << 20)
        A("v_mov_b32 v10, -1"); A("v_mov_b32 v11, 0")
        for r in (12, 13, 14): A(f"v_mov_b32 v{r}, 0")
        A("s_mov_b32 s20, 0")
        L = A.new("rep")
        A.label(L)
        A(f"buffer_load_dword v2, v1, s[8:11], s20 offen offset:56")
        A(f"buffer_load_dword v3, v1, s[8:11], s20 offen offset:60")
        A(f"buffer_load_dword v4, v1, s[8:11], s20 offen offset:{4*sl}")
        A(f"buffer_load_dword v5, v1, s[8:11], s20 offen offset:{4*sm}")
        A(f"buffer_load_dword v6, v1, s[8:11], s20 offen offset:{4*se}")
        A("s_waitcnt vmcnt(0)")
        A("v_min_u32 v10, v10, v2"); A("v_max_u32 v11, v11, v3")
        A("v_add_u32 v12, v12, v4"); A("v_max_u32 v13, v13, v5"); A("v_max_u32 v14, v14, v6")
        A("s_add_u32 s20, s20, 4096")
        A(f"s_cmp_lt_u32 s20, {2048*64}")
        A(f"s_cbranch_scc1 {L}")
        A("s_mov_b32 s30, -1")
        for r in (31, 32, 33, 34): A(f"s_mov_b32 s{r}, 0")
        A("s_nop 1")
        for l in range(64):
            A(f"v_readlane_b32 s21, v10, {l}"); A(f"v_readlane_b32 s22, v11, {l}"); A(f"v_readlane_b32 s23, v12, {l}")
            A(f"v_readlane_b32 s24, v13, {l}"); A(f"v_readlane_b32 s25, v14, {l}")
            A("s_nop 0")
            A("s_min_u32 s30, s30, s21"); A("s_max_u32 s31, s31, s22"); A("s_add_u32 s32, s32, s23")
            A("s_max_u32 s33, s33, s24"); A("s_max_u32 s34, s34, s25")
        if k == 0: A("s_mov_b32 s40, s30")
        A("s_sub_u32 s30, s30, s40"); A("s_sub_u32 s31, s31, s40"); A("s_lshr_b32 s32, s32, 11")
        for r in (30, 31, 32, 33, 34):
            A(f"v_mov_b32 v20, s{r}"); A(f"v_mov_b32 v21, {4*outw}")
            A("buffer_store_dword v20, v21, s[12:15], 0 offen"); A("s_nop 1")
            outw += 1
    A.label(f"{name}_end")
    A("s_endpgm")
    return dict(name=name, nv=32, accum=32, lds=0, block=64, grid=1)
```

```python
from asm import *
from k2b import Prof, mfma
from k2c import fbits
import math

BUFSZ = 49152
OFF_W = 16384
LDS_TOTAL = 3 * BUFSZ
QSCALE = 0.25 * math.log2(math.e)
WS_ST = 18 << 20
WS_RD = WS_ST + 32768
WS_CS = WS_RD + 8192
N_GEMM, N_ROW, N_COL = 208, 16, 26

def gen_k1(A, name="proj_kernel", prof=False, var=""):
    kernel_header(A, name)
    SRD_X, SRD_W, SRD_WS, SRD_B1, SRD_DBG, SRD_ST = 16, 20, 24, 28, 32, 36
    sW, sTH, sP, sCG, sRB = 40, 41, 42, 43, 44
    sXo = [45, 46]; sWo = [47, 48, 49, 50]; sLx, sLp, sWstep, sCol = 51, 52, 53, 54
    vT = [1, 2, 3, 4, 5, 6, 7]
    pr = Prof(A, prof)
    A("s_cmp_ge_u32 s2, 250")
    A(f"s_cbranch_scc1 {name}_end")
    pr.begin()
    A(f"s_load_dwordx4 s[4:7], s[0:1], {KA_X}")
    A(f"s_load_dwordx4 s[8:11], s[0:1], {KA_W1}")
    A(f"s_load_dwordx4 s[12:15], s[0:1], {KA_DBG}")
    A(f"v_lshrrev_b32 v{vT[0]}, 6, v0")
    A("v_and_b32 v0, 63, v0")
    A(f"v_readfirstlane_b32 s{sW}, v{vT[0]}")
    A(f"s_cmp_ge_u32 s2, {N_GEMM}")
    A(f"s_cbranch_scc1 {name}_helper")
    A("s_and_b32 s3, s2, 7")
    A("s_lshr_b32 s55, s2, 3")
    A("s_lshr_b32 s56, s3, 1")
    A("s_mul_i32 s56, s56, 26")
    A("s_add_u32 s56, s56, s55")
    A(f"s_lshr_b32 s{sCG}, s56, 3")
    A(f"s_and_b32 s{sRB}, s3, 1")
    A(f"s_lshl_b32 s{sRB}, s{sRB}, 3")
    A("s_and_b32 s56, s56, 7")
    A(f"s_add_u32 s{sRB}, s{sRB}, s56")
    A(f"s_lshr_b32 s{sTH}, s{sW}, 2")
    A(f"s_and_b32 s{sP}, s{sW}, 3")
    vXd = [8, 9]; vWd = 10
    vXr = [12, 13, 14, 15]; vWr = [16, 17]
    XF = [[20, 24], [28, 32]]
    WF = [[36, 40], [44, 48]]
    ACC = [[52, 68], [84, 100]]
    AP = [116, 120]; BP = [124, 128]; vRd = [132, 133]; vCS = [134, 135]; vB1 = [136, 137]; vFlag = 138
    RD = [140, 156]
    PK = 172
    NV = 180
    A(f"s_cmp_lt_u32 s{sCG}, 6")
    A(f"s_mov_b32 s58, 3584")
    A(f"s_cselect_b32 s57, 3072, s58")
    A(f"s_cselect_b32 s58, 0, 6")
    A(f"s_sub_u32 s{sCol}, s{sCG}, s58")
    A(f"s_lshl_b32 s{sCol}, s{sCol}, 8")
    A(f"s_lshl_b32 s{sWstep}, s57, 6")
    A(f"v_lshrrev_b32 v{vT[0]}, 3, v0")
    A(f"v_and_b32 v{vT[1]}, 7, v0")
    A(f"v_lshrrev_b32 v{vT[2]}, 4, v0")
    A(f"v_xor_b32 v{vT[3]}, v{vT[1]}, v{vT[2]}")
    A(f"v_lshlrev_b32 v{vT[3]}, 4, v{vT[3]}")
    A(f"v_lshl_add_u32 v{vXd[0]}, v{vT[0]}, 10, v{vT[3]}")
    A(f"v_xor_b32 v{vXd[1]}, 64, v{vXd[0]}")
    A(f"v_and_b32 v{vT[3]}, 1, v{vT[2]}")
    A(f"v_lshlrev_b32 v{vT[3]}, 2, v{vT[3]}")
    A(f"v_xor_b32 v{vT[3]}, v{vT[1]}, v{vT[3]}")
    A(f"v_lshlrev_b32 v{vT[3]}, 4, v{vT[3]}")
    A(f"v_mul_lo_u32 v{vWd}, s57, v{vT[0]}")
    A(f"v_add_u32 v{vWd}, v{vWd}, v{vT[3]}")
    A(f"s_lshl_b32 s{sXo[0]}, s{sW}, 14")
    A(f"s_add_u32 s{sXo[1]}, s{sXo[0]}, 8192")
    A(f"s_mul_i32 s58, s57, s{sW}")
    A("s_lshl_b32 s58, s58, 3")
    A(f"s_lshl_b32 s59, s{sCol}, 1")
    A(f"s_add_u32 s{sWo[0]}, s58, s59")
    for q in range(1, 4): A(f"s_add_u32 s{sWo[q]}, s{sWo[0]}, {128*q}")
    A(f"s_lshl_b32 s{sLx}, s{sW}, 11")
    A(f"s_lshl_b32 s{sLp}, s{sW}, 10")
    A("s_waitcnt lgkmcnt(0)")
    pr.stamp()
    A(f"s_lshl_b32 s58, s{sRB}, 17")
    A("s_add_u32 s4, s4, s58")
    A("s_addc_u32 s5, s5, 0")
    srd(A, SRD_X, 4, 5, 0, 128*1024)
    A(f"s_cmp_lt_u32 s{sCG}, 6")
    A(f"s_cselect_b32 s{SRD_W}, s6, s8")
    A(f"s_cselect_b32 s{SRD_W+1}, s7, s9")
    A(f"s_lshl_b32 s{SRD_W+2}, s57, 9")
    A(f"s_mov_b32 s{SRD_W+3}, 0x20000")

    def dma_list(st):
        b = (st % 3) * BUFSZ
        out = []
        for e in range(2):
            out.append([f"s_add_u32 m0, s{sLx}, {b + e*1024}", "s_nop 0",
                        f"buffer_load_dwordx4 v{vXd[e]}, s[{SRD_X}:{SRD_X+3}], s{sXo[e]} offen lds",
                        f"s_add_u32 s{sXo[e]}, s{sXo[e]}, 128"])
        for q in range(4):
            out.append([f"s_add_u32 m0, s{sLp}, {b + OFF_W + q*8192}", "s_nop 0",
                        f"buffer_load_dwordx4 v{vWd}, s[{SRD_W}:{SRD_W+3}], s{sWo[q]} offen lds",
                        f"s_add_u32 s{sWo[q]}, s{sWo[q]}, s{sWstep}"])
        return out
    for d in dma_list(0):
        for x in d: A(x)
    A("s_barrier")
    srd(A, SRD_WS, 14, 15, 0, WS_CS + 3328*4)
    srd(A, SRD_DBG, 12, 13, 0, 256)
    srd(A, SRD_B1, 10, 11, 0, 3584)
    A(f"v_and_b32 v{vT[0]}, 31, v0")
    A(f"s_lshl_b32 s58, s{sTH}, 6")
    A(f"v_add_u32 v{vT[0]}, s58, v{vT[0]}")
    A(f"v_lshrrev_b32 v{vT[1]}, 1, v{vT[0]}")
    A(f"v_and_b32 v{vT[1]}, 7, v{vT[1]}")
    A(f"v_lshrrev_b32 v{vT[2]}, 5, v0")
    A(f"v_xor_b32 v{vT[1]}, v{vT[1]}, v{vT[2]}")
    A(f"v_lshlrev_b32 v{vT[1]}, 4, v{vT[1]}")
    A(f"v_lshl_add_u32 v{vT[1]}, v{vT[0]}, 7, v{vT[1]}")
    for j in range(4):
        A(f"v_xor_b32 v{vXr[j]}, {j << 5}, v{vT[1]}")
    A(f"v_and_b32 v{vT[0]}, 15, v0")
    A(f"v_lshrrev_b32 v{vT[0]}, 2, v{vT[0]}")
    A(f"v_lshl_add_u32 v{vT[3]}, v{vT[2]}, 3, v{vT[0]}")
    A(f"v_bfe_u32 v{vT[4]}, v0, 4, 1")
    A(f"v_lshlrev_b32 v{vT[4]}, 5, v{vT[4]}")
    A(f"v_and_b32 v{vT[5]}, 3, v0")
    A(f"v_lshl_add_u32 v{vT[4]}, v{vT[5]}, 3, v{vT[4]}")
    A(f"v_lshrrev_b32 v{vT[0]}, 1, v{vT[0]}")
    A(f"v_lshl_add_u32 v{vT[4]}, v{vT[0]}, 6, v{vT[4]}")
    A(f"v_lshl_add_u32 v{vT[5]}, v{vT[3]}, 7, v{vT[4]}")
    A(f"s_lshl_b32 s58, s{sP}, 13")
    A(f"s_add_u32 s58, s58, {OFF_W}")
    A(f"v_add_u32 v{vWr[0]}, s58, v{vT[5]}")
    A(f"v_xor_b32 v{vWr[1]}, 64, v{vWr[0]}")
    A(f"s_lshl_b32 s58, s{sCG}, 1")
    A("s_add_u32 s58, s58, 15")
    A("v_add_u32 v%d, s58, v0" % vFlag)
    A(f"v_mov_b32 v{vT[0]}, s{sRB}")
    A("v_cmp_eq_u32 vcc, 0, v0")
    A("s_nop 1")
    A(f"v_cndmask_b32 v{vFlag}, v{vFlag}, v{vT[0]}, vcc")
    A(f"v_lshlrev_b32 v{vFlag}, 2, v{vFlag}")
    A(f"v_min_u32 v{vFlag}, 252, v{vFlag}")

    def advance(delta):
        for r in vXr + vWr:
            A(f"v_add_u32 v{r}, {delta & 0xffffffff:#x}, v{r}")
    def reads(j, buf):
        out = []
        for tt in range(2):
            out.append(f"ds_read_b128 v[{XF[buf][tt]}:{XF[buf][tt]+3}], v{vXr[j]} offset:{tt*4096}")
        for u in range(2):
            for t in range(2):
                out.append(f"ds_read_b64_tr_b16 v[{WF[buf][u]+2*t}:{WF[buf][u]+2*t+1}], v{vWr[u]} offset:{j*2048 + t*512}")
        return out
    def compute(buf, swap, rd, extra):
        slots = [rd[0:2], rd[2:4], rd[4:6], []]
        order = (3, 1, 2, 0)
        for i, e in enumerate(extra): slots[order[i % 4]].append(e)
        k = 0
        for tt in range(2):
            for u in range(2):
                if swap: mfma(A, ACC[tt][u], XF[buf][tt], WF[buf][u], ACC[tt][u])
                else:    mfma(A, ACC[tt][u], WF[buf][u], XF[buf][tt], ACC[tt][u])
                for f in slots[k]:
                    for x in (f if isinstance(f, list) else [f]): A(x)
                k += 1

    def path(label, kind):
        A.label(label)
        pr.n = n_common
        swap = kind == 'V'
        for tt in range(2):
            for u in range(2):
                for r in range(16): A(f"v_mov_b32 v{ACC[tt][u]+r}, 0")
        for d in dma_list(1):
            for x in d: A(x)
        pr.stamp()
        A("s_waitcnt vmcnt(6)")
        A("s_barrier")
        pr.stamp()
        for x in reads(0, 0): A(x)
        buf = 0
        pending = dma_list(2)
        for st in range(8):
            for j in range(4):
                if j < 3:
                    A("s_waitcnt lgkmcnt(0)")
                    ntake = 2 if st > 0 else 3 if j < 2 else 0
                    take, pending = pending[:ntake], pending[ntake:]
                    compute(buf, swap, reads(j+1, buf ^ 1), take)
                else:
                    A("s_waitcnt lgkmcnt(0)")
                    rd, fill = [], []
                    if st < 7:
                        assert not pending
                        n_out = 6 if st < 6 else 0
                        A(f"s_waitcnt vmcnt({n_out})")
                        if st == 6:
                            Lp, Lq = A.new(f"{name}_poll"), A.new(f"{name}_ok")
                            A.label(Lp)
                            A(f"v_cmp_ne_u32 vcc, 0, v{vFlag+1}")
                            A("s_nop 3")
                            A("s_and_b32 s58, vcc_lo, 7")
                            A("s_cmp_eq_u32 s58, 7")
                            A(f"s_cbranch_scc1 {Lq}")
                            A("s_sleep 2")
                            A(f"buffer_load_dword v{vFlag+1}, v{vFlag}, s[{SRD_DBG}:{SRD_DBG+3}], 0 offen sc1")
                            A("s_waitcnt vmcnt(0)")
                            A(f"s_branch {Lp}")
                            A.label(Lq)
                        A("s_barrier")
                        if st + 3 < 8: pending = dma_list(st + 3)
                        advance(((st+1) % 3 - st % 3) * BUFSZ)
                        rd = reads(0, buf ^ 1)
                        fill, pending = pending[:2], pending[2:]
                        if st == 5:
                            fill.append(f"buffer_load_dword v{vFlag+1}, v{vFlag}, s[{SRD_DBG}:{SRD_DBG+3}], 0 offen sc1")
                        if st == 6:
                            sl = []
                            for x in stat_loads(kind): sl += (x if isinstance(x, list) else [x])
                            fill = [sl]
                    compute(buf, swap, rd, fill)
                buf ^= 1
        pr.stamp()
        epilogue(kind)
        A(f"s_branch {name}_fin")

    def stat_loads(kind):
        o = []
        o.append([f"v_and_b32 v{vT[0]}, 31, v0", f"v_lshlrev_b32 v{vT[1]}, 4, v{vT[0]}",
                  f"s_lshl_b32 s58, s{sRB}, 7", f"s_lshl_b32 s59, s{sTH}, 6", "s_add_u32 s58, s58, s59",
                  "s_lshl_b32 s59, s58, 4", f"s_add_u32 s59, s59, {WS_ST}"])
        for tt in range(2):
            o.append(f"buffer_load_dwordx4 v[{BP[tt]}:{BP[tt]+3}], v{vT[1]}, s[{SRD_WS}:{SRD_WS+3}], s59 offen offset:{tt*512} sc1")
        o.append([f"v_lshlrev_b32 v{vT[2]}, 2, v{vT[0]}", f"s_lshl_b32 s59, s{sCG}, 8", f"s_lshl_b32 s60, s{sP}, 6",
                  "s_add_u32 s59, s59, s60", "s_lshl_b32 s60, s59, 2", f"s_add_u32 s60, s60, {WS_CS}"])
        for u in range(2):
            o.append(f"buffer_load_dword v{vCS[u]}, v{vT[2]}, s[{SRD_WS}:{SRD_WS+3}], s60 offen offset:{u*128} sc1")
        if kind == 'H':
            o.append([f"v_lshlrev_b32 v{vT[3]}, 1, v{vT[0]}", "s_sub_u32 s60, s59, 1536", "s_lshl_b32 s60, s60, 1"])
            for u in range(2):
                o.append(f"buffer_load_ushort v{vB1[u]}, v{vT[3]}, s[{SRD_B1}:{SRD_B1+3}], s60 offen offset:{u*64}")
        if kind == 'V':
            o.append([f"v_lshrrev_b32 v{vT[3]}, 5, v0", f"v_lshlrev_b32 v{vT[3]}, 4, v{vT[3]}",
                      "s_lshl_b32 s60, s58, 2", f"s_add_u32 s60, s60, {WS_RD}"])
            for tt in range(2):
                for g in range(4):
                    o.append(f"buffer_load_dwordx4 v[{RD[tt]+4*g}:{RD[tt]+4*g+3}], v{vT[3]}, s[{SRD_WS}:{SRD_WS+3}], s60 offen offset:{tt*128 + g*32} sc1")
        return o

    def epilogue(kind):
        swap = kind == 'V'
        A("s_mov_b32 s60, -1"); A("s_mov_b32 s61, 0")
        A("s_waitcnt vmcnt(0)")
        for tt in range(2):
            A(f"v_mov_b32 v{vRd[tt]}, v{BP[tt]+2}")
            A(f"v_mov_b32 v{BP[tt]+2}, 0")
            A(f"v_mov_b32 v{BP[tt]+3}, 0")
        for u in range(2):
            c = vCS[u]
            A(f"v_cvt_pk_bf16_f32 v{vT[0]}, v{c}, v{c}")
            A(f"v_lshlrev_b32 v{vT[0]}, 16, v{vT[0]}")
            A(f"v_sub_f32 v{vT[0]}, v{c}, v{vT[0]}")
            A(f"v_cvt_pk_bf16_f32 v{vT[0]}, v{c}, v{vT[0]}")
            A(f"v_cndmask_b32 v{AP[u]}, 0, v{vT[0]}, s[60:61]")
            if kind == 'H': A(f"v_cndmask_b32 v{AP[u]+1}, 0, v{vB1[u]}, s[60:61]")
            else:           A(f"v_mov_b32 v{AP[u]+1}, 0")
            A(f"v_mov_b32 v{AP[u]+2}, 0")
            A(f"v_mov_b32 v{AP[u]+3}, 0")
        A("s_nop 1")
        for tt in range(2):
            for u in range(2):
                if swap: mfma(A, ACC[tt][u], BP[tt], AP[u], ACC[tt][u])
                else:    mfma(A, ACC[tt][u], AP[u], BP[tt], ACC[tt][u])
        pr.stamp()
        A(f"v_lshlrev_b32 v{vT[6]}, 4, v0")
        A(f"s_lshl_b32 s58, s{sRB}, 2")
        A(f"s_lshl_b32 s59, s{sTH}, 1")
        A("s_add_u32 s58, s58, s59")
        A(f"s_lshl_b32 s59, s{sCG}, 4")
        A(f"s_lshl_b32 s62, s{sP}, 2")
        A("s_add_u32 s59, s59, s62")
        if kind == 'V':
            A(f"v_and_b32 v{vT[0]}, 15, v0")
            A(f"v_lshlrev_b32 v{vT[0]}, 4, v{vT[0]}")
            A(f"v_lshrrev_b32 v{vT[1]}, 5, v0")
            A(f"v_lshl_add_u32 v{vT[0]}, v{vT[1]}, 8, v{vT[0]}")
            A(f"v_bfe_u32 v{vT[1]}, v0, 4, 1")
            A(f"v_lshl_add_u32 v{vT[5]}, v{vT[1]}, 16, v{vT[0]}")
        if kind == 'QK':
            A(f"s_cmp_lt_u32 s{sCG}, 2")
            A(f"s_cselect_b32 s63, {fbits(QSCALE)}, 1.0")
            for tt in range(2): A(f"v_mul_f32 v{vRd[tt]}, s63, v{vRd[tt]}")
        A("s_nop 4")
        n = 0
        for tt in range(2):
            for u in range(2):
                acc = ACC[tt][u]
                pk = PK if n % 2 == 0 else AP[0]
                if n == 1: A("s_nop 3")
                if kind == 'QK':
                    for h in range(2):
                        for r in range(8): A(f"v_mul_f32 v{acc+8*h+r}, v{acc+8*h+r}, v{vRd[tt]}")
                        for j in range(4): A(f"v_cvt_pk_bf16_f32 v{pk+4*h+j}, v{acc+8*h+2*j}, v{acc+8*h+2*j+1}")
                        A(f"s_add_u32 s62, s59, {2*u + h}")
                        A("s_lshl_b32 s62, s62, 16")
                        A(f"s_add_u32 s63, s58, {tt}")
                        A("s_lshl_b32 s63, s63, 10")
                        A("s_add_u32 s62, s62, s63")
                        A(f"buffer_store_dwordx4 v[{pk+4*h}:{pk+4*h+3}], v{vT[6]}, s[{SRD_WS}:{SRD_WS+3}], s62 offen")
                elif kind == 'V':
                    A(f"s_add_u32 s62, s59, {2*u}")
                    A("s_lshl_b32 s62, s62, 16")
                    A(f"s_add_u32 s63, s58, {tt}")
                    A("s_lshl_b32 s63, s63, 10")
                    A("s_add_u32 s62, s62, s63")
                    for h in range(2):
                        for r in range(8): A(f"v_mul_f32 v{acc+8*h+r}, v{acc+8*h+r}, v{RD[tt]+8*h+r}")
                        for j in range(4): A(f"v_cvt_pk_bf16_f32 v{pk+4*h+j}, v{acc+8*h+2*j}, v{acc+8*h+2*j+1}")
                        A(f"buffer_store_dwordx4 v[{pk+4*h}:{pk+4*h+3}], v{vT[5]}, s[{SRD_WS}:{SRD_WS+3}], s62 offen offset:{h*512}")
                else:
                    A(f"s_add_u32 s62, s58, {tt}")
                    A(f"s_mul_i32 s62, s62, {ACT_TILE}")
                    A(f"s_add_u32 s63, s59, {32 - 96 + 2*u}")
                    A("s_lshl_b32 s63, s63, 10")
                    A("s_add_u32 s62, s62, s63")
                    A(f"s_add_u32 s62, s62, {WS_ACT}")
                    for h in range(2):
                        for r in range(8): A(f"v_mul_f32 v{acc+8*h+r}, v{acc+8*h+r}, |v{acc+8*h+r}|")
                        for j in range(4): A(f"v_cvt_pk_bf16_f32 v{pk+4*h+j}, v{acc+8*h+2*j}, v{acc+8*h+2*j+1}")
                        for j in range(4): A(f"v_pk_max_i16 v{pk+4*h+j}, v{pk+4*h+j}, 0")
                        A(f"buffer_store_dwordx4 v[{pk+4*h}:{pk+4*h+3}], v{vT[6]}, s[{SRD_WS}:{SRD_WS+3}], s62 offen offset:{h*1024}")
                n += 1

    n_common = pr.n
    A(f"s_cmp_lt_u32 s{sCG}, 4")
    A(f"s_cbranch_scc1 {name}_QK")
    A(f"s_cmp_lt_u32 s{sCG}, 6")
    A(f"s_cbranch_scc1 {name}_V")
    path(f"{name}_H", 'H')
    path(f"{name}_QK", 'QK')
    path(f"{name}_V", 'V')

    A.label(f"{name}_helper")
    A("s_waitcnt lgkmcnt(0)")
    srd(A, SRD_WS, 14, 15, 0, WS_CS + 3328*4)
    srd(A, SRD_DBG, 12, 13, 0, 256)
    A(f"v_lshlrev_b32 v1, 4, v0")
    A(f"v_mov_b32 v2, 0x3f803f80")
    A(f"s_cmp_ge_u32 s2, {N_GEMM + N_ROW}")
    A(f"s_cbranch_scc1 {name}_colsum")
    A(f"s_sub_u32 s{sRB}, s2, {N_GEMM}")
    A(f"s_lshl_b32 s58, s{sRB}, 7")
    A(f"s_lshl_b32 s59, s{sW}, 4")
    A("s_add_u32 s58, s58, s59")
    srd(A, SRD_X, 4, 5, 0, 2048*1024)
    A("s_lshl_b32 s59, s58, 10")
    XR = 16
    for r in range(16):
        A(f"buffer_load_dwordx4 v[{XR+4*r}:{XR+4*r+3}], v1, s[{SRD_X}:{SRD_X+3}], s59 offen")
        A("s_add_u32 s59, s59, 1024")
    A(f"s_lshl_b32 s60, s{sW}, 13")
    A("v_lshlrev_b32 v3, 2, v0")
    A("v_add_u32 v3, s60, v3")
    for r in range(16):
        A(f"s_waitcnt vmcnt({15-r})")
        A("v_mov_b32 v4, 0"); A("v_mov_b32 v5, 0")
        for k in range(4):
            A(f"v_dot2_f32_bf16 v4, v{XR+4*r+k}, v2, v4")
            A(f"v_dot2_f32_bf16 v5, v{XR+4*r+k}, v{XR+4*r+k}, v5")
        A("s_nop 2")
        A(f"ds_write_b32 v3, v4 offset:{r*256}")
        A(f"ds_write_b32 v3, v5 offset:{4096 + r*256}")
    A("v_lshrrev_b32 v4, 2, v0"); A("v_lshlrev_b32 v4, 8, v4")
    A("v_and_b32 v5, 3, v0"); A("v_lshl_add_u32 v4, v5, 6, v4")
    A("v_add_u32 v4, s60, v4")
    A("s_waitcnt lgkmcnt(0)")
    for s_ in range(2):
        for k in range(4):
            A(f"ds_read_b128 v[{16+16*s_+4*k}:{16+16*s_+4*k+3}], v4 offset:{s_*4096 + k*16}")
    A("s_waitcnt lgkmcnt(0)")
    for s_ in range(2):
        b = 16 + 16*s_
        for st_ in (8, 4, 2, 1):
            for k in range(st_): A(f"v_add_f32 v{b+k}, v{b+k}, v{b+k+st_}")
    for perm in ("quad_perm:[1,0,3,2]", "quad_perm:[2,3,0,1]"):
        A("s_nop 1")
        A(f"v_add_f32_dpp v16, v16, v16 {perm} row_mask:0xf bank_mask:0xf")
        A(f"v_add_f32_dpp v32, v32, v32 {perm} row_mask:0xf bank_mask:0xf")
    m, q, t3 = 16, 32, 6
    A(f"v_mul_f32 v{m}, {fbits(1/512)}, v{m}")
    A(f"v_mul_f32 v{q}, {fbits(1/512)}, v{q}")
    A(f"v_fma_f32 v{q}, -v{m}, v{m}, v{q}")
    A(f"v_max_f32 v{q}, 0, v{q}")
    A(f"v_cvt_pk_bf16_f32 v{t3}, v{q}, v{q}")
    A(f"v_and_b32 v{t3}, 0xffff0000, v{t3}")
    A(f"v_add_f32 v{t3}, {fbits(1e-5)}, v{t3}")
    A(f"v_cvt_pk_bf16_f32 v{t3}, v{t3}, v{t3}")
    A(f"v_and_b32 v{t3}, 0xffff0000, v{t3}")
    A(f"v_sqrt_f32 v{t3}, v{t3}")
    A(f"v_sub_f32 v{m}, 0, v{m}")
    A(f"v_cvt_pk_bf16_f32 v49, v{t3}, 0")
    A(f"v_cvt_pk_bf16_f32 v48, v{m}, v{m}")
    A(f"v_lshlrev_b32 v{t3}, 16, v49")
    A(f"v_rcp_f32 v50, v{t3}")
    A("v_mov_b32 v51, 0")
    A("v_lshrrev_b32 v7, 2, v0")
    A("v_lshlrev_b32 v8, 4, v7"); A("v_lshlrev_b32 v9, 2, v7")
    A("s_lshl_b32 s59, s58, 4"); A(f"s_add_u32 s59, s59, {WS_ST}")
    A("s_lshl_b32 s60, s58, 2"); A(f"s_add_u32 s60, s60, {WS_RD}")
    A("v_and_b32 v10, 3, v0")
    A("v_cmp_eq_u32 vcc, 0, v10")
    A("s_and_saveexec_b64 s[62:63], vcc")
    A(f"buffer_store_dwordx4 v[48:51], v8, s[{SRD_WS}:{SRD_WS+3}], s59 offen sc1")
    A(f"buffer_store_dword v50, v9, s[{SRD_WS}:{SRD_WS+3}], s60 offen sc1")
    A("s_mov_b64 exec, s[62:63]")
    A(f"s_lshl_b32 s58, s{sRB}, 2")
    A(f"s_branch {name}_signal")
    A.label(f"{name}_colsum")
    A(f"s_sub_u32 s{sCG}, s2, {N_GEMM + N_ROW}")
    A(f"s_cmp_lt_u32 s{sCG}, 12")
    A("s_mov_b32 s58, 3584")
    A("s_cselect_b32 s57, 3072, s58")
    A(f"s_cselect_b32 s{SRD_W}, s6, s8")
    A(f"s_cselect_b32 s{SRD_W+1}, s7, s9")
    A("s_cselect_b32 s58, 0, 12")
    A(f"s_lshl_b32 s{SRD_W+2}, s57, 9")
    A(f"s_mov_b32 s{SRD_W+3}, 0x20000")
    A(f"s_sub_u32 s58, s{sCG}, s58")
    A("s_lshl_b32 s58, s58, 8")
    A("v_lshrrev_b32 v3, 4, v0")
    A("v_mul_lo_u32 v3, s57, v3")
    A("v_and_b32 v4, 15, v0")
    A("v_lshl_add_u32 v3, v4, 4, v3")
    A(f"s_mul_i32 s59, s57, s{sW}")
    A("s_lshl_b32 s59, s59, 2")
    A("s_add_u32 s58, s58, s59")
    A("s_lshl_b32 s59, s57, 5")
    for r in range(16):
        A(f"buffer_load_dwordx4 v[{16+4*r}:{16+4*r+3}], v3, s[{SRD_W}:{SRD_W+3}], s58 offen")
        A("s_add_u32 s58, s58, s59")
    A("v_mov_b32 v5, 0x00003f80"); A("v_mov_b32 v6, 0x3f800000")
    for k in range(8): A(f"v_mov_b32 v{80+k}, 0")
    for r in range(16):
        A(f"s_waitcnt vmcnt({15-r})")
        for k in range(4):
            A(f"v_dot2_f32_bf16 v{80+2*k}, v{16+4*r+k}, v5, v{80+2*k}")
            A(f"v_dot2_f32_bf16 v{81+2*k}, v{16+4*r+k}, v6, v{81+2*k}")
    A(f"s_lshl_b32 s60, s{sW}, 11")
    A("v_lshlrev_b32 v7, 5, v0")
    A("v_add_u32 v7, s60, v7")
    A("s_nop 2")
    A("ds_write_b128 v7, v[80:83]")
    A("ds_write_b128 v7, v[84:87] offset:16")
    A("s_waitcnt lgkmcnt(0)")
    A("s_barrier")
    A(f"s_cmp_ge_u32 s{sW}, 2")
    A(f"s_cbranch_scc1 {name}_csdone")
    A(f"s_lshl_b32 s60, s{sW}, 6")
    A("v_add_u32 v8, s60, v0")
    A("v_lshrrev_b32 v9, 3, v8"); A("v_lshlrev_b32 v9, 5, v9")
    A("v_and_b32 v10, 7, v8"); A("v_lshl_add_u32 v9, v10, 2, v9")
    for wv in range(8):
        for rg in range(4):
            A(f"ds_read_b32 v{16+wv*4+rg}, v9 offset:{wv*2048 + rg*512}")
    A("s_waitcnt lgkmcnt(0)")
    for st_ in (16, 8, 4, 2, 1):
        for k in range(st_): A(f"v_add_f32 v{16+k}, v{16+k}, v{16+k+st_}")
    A("v_lshlrev_b32 v8, 2, v8")
    A(f"s_lshl_b32 s60, s{sCG}, 9")
    A(f"s_add_u32 s60, s60, {WS_CS}")
    A(f"buffer_store_dword v16, v8, s[{SRD_WS}:{SRD_WS+3}], s60 offen sc1")
    A.label(f"{name}_csdone")
    A(f"s_add_u32 s58, s{sCG}, 16")
    A("s_lshl_b32 s58, s58, 2")
    A.label(f"{name}_signal")
    A("s_waitcnt vmcnt(0)")
    A("s_barrier")
    A(f"s_cmp_lg_u32 s{sW}, 0")
    A(f"s_cbranch_scc1 {name}_end")
    A("v_mov_b32 v2, 1"); A("v_mov_b32 v3, 0")
    A("v_cmp_eq_u32 vcc, 0, v0")
    A("s_and_saveexec_b64 s[62:63], vcc")
    A(f"buffer_store_dword v2, v3, s[{SRD_DBG}:{SRD_DBG+3}], s58 offen sc1")
    A("s_endpgm")
    A.label(f"{name}_fin")
    pr.finish(14, 15, sW, vT[0], vT[1], 31 << 20)
    A.label(f"{name}_end")
    A("s_endpgm")
    return dict(name=name, nv=NV, accum=NV, lds=LDS_TOTAL, block=512, grid=250)
```

```python
from asm import *
import struct
def fbits(f): return hex(struct.unpack('<I', struct.pack('<f', f))[0])

BIAS = 90.0

class Prof:
    def __init__(self, A, on, base=64):
        self.A, self.on, self.n, self.base = A, on, 0, base
    def stamp(self):
        if self.on:
            b = self.base + 2*self.n
            self.A(f"s_memtime s[{b}:{b+1}]"); self.A("s_waitcnt lgkmcnt(0)"); self.n += 1
    def begin(self):
        if self.on: self.A("s_memrealtime s[96:97]")
        self.stamp()
    def finish(self, ws_lo, ws_hi, sW, vt0, vt1, region, nw=8):
        if not self.on: return
        A = self.A
        self.stamp()
        A("s_memrealtime s[98:99]"); A("s_waitcnt lgkmcnt(0)")
        srd(A, 44, ws_lo, ws_hi, region, 1 << 20)
        A("s_lshl_b32 s10, s2, 4"); A(f"s_add_u32 s10, s10, s{sW}"); A("s_lshl_b32 s10, s10, 6")
        for k in range(1, self.n):
            A(f"s_sub_u32 s11, s{self.base+2*k}, s{self.base}")
            A(f"v_mov_b32 v{vt0}, s11"); A(f"v_mov_b32 v{vt1}, {4*k}")
            A(f"buffer_store_dword v{vt0}, v{vt1}, s[44:47], s10 offen")
        for reg, o in ((96, 56), (98, 60)):
            A(f"v_mov_b32 v{vt0}, s{reg}"); A(f"v_mov_b32 v{vt1}, {o}")
            A(f"buffer_store_dword v{vt0}, v{vt1}, s[44:47], s10 offen")

def maxtree(A, dst, regs):
    A(f"v_max3_f32 v{dst}, v{regs[0]}, v{regs[1]}, v{regs[2]}")
    i = 3
    while i + 1 < len(regs):
        A(f"v_max3_f32 v{dst}, v{dst}, v{regs[i]}, v{regs[i+1]}"); i += 2
    if i < len(regs):
        A(f"v_max_f32 v{dst}, v{dst}, v{regs[i]}")

def mfma(A, d, a_, b_, c):
    cs = "0" if c is None else f"v[{c}:{c+15}]"
    A(f"v_mfma_f32_32x32x16_bf16 v[{d}:{d+15}], v[{a_}:{a_+3}], v[{b_}:{b_+3}], {cs}")

def gen_k2(A, name="attn_kernel", prof=False, var=""):
    kernel_header(A, name)
    vK, vV, vT0, vT1, vT2, vM = 1, 2, 3, 4, 5, 6
    Q = [8, 12]; KB = [16, 20]; VB = [24, 32]; P = 40
    S = [48, 64]; O = [80, 96]; M = [112, 128]
    NV = 144
    sW, sH, sQB, sTT, sKH = 20, 21, 22, 23, 16
    SRD_Q, SRD_K, SRD_V, SRD_O = 24, 28, 32, 36
    sMaskV = 40
    LDS_V, LDS_X = 65536, 131072
    pr = Prof(A, prof)
    A("s_cmp_ge_u32 s2, 256")
    A(f"s_cbranch_scc1 {name}_end")
    pr.begin()
    A(f"s_load_dwordx2 s[4:5], s[0:1], {KA_WS}")
    A(f"v_lshrrev_b32 v{vT0}, 6, v0")
    A("v_and_b32 v0, 63, v0")
    A(f"v_readfirstlane_b32 s{sW}, v{vT0}")
    A(f"s_and_b32 s{sH}, s2, 7")
    A(f"s_lshl_b32 s{sH}, s{sH}, 2")
    A("s_bfe_u32 s3, s2, 0x20003")
    A(f"s_add_u32 s{sH}, s{sH}, s3")
    A(f"s_lshr_b32 s{sQB}, s2, 5")
    A(f"v_lshlrev_b32 v{vK}, 4, v0")
    A(f"s_lshr_b32 s{sKH}, s{sW}, 2")
    A(f"s_and_b32 s17, s{sW}, 3")
    A(f"s_lshl_b32 s10, s{sKH}, 5")
    A("s_add_u32 s10, s10, s17")
    A("s_lshl_b32 s10, s10, 10")
    A(f"s_lshl_b32 s{sTT}, s{sQB}, 3")
    A("s_lshl_b32 s18, s17, 1")
    A(f"s_add_u32 s{sTT}, s{sTT}, s18")
    A(f"s_lshl_b32 s14, s{sTT}, 10")
    A(f"s_lshl_b32 s6, s{sH}, 16")
    A("s_waitcnt lgkmcnt(0)")
    pr.stamp()
    A("s_add_u32 s8, s4, s6")
    A("s_addc_u32 s9, s5, 0")
    srd(A, SRD_K, 8, 9, WS_K, 65536)
    srd(A, SRD_V, 8, 9, WS_V, 65536)
    srd(A, SRD_Q, 8, 9, WS_Q, 65536)
    for c in range(8):
        A(f"s_add_u32 s11, s10, {c*4096}")
        A("s_mov_b32 m0, s11")
        A(f"s_add_u32 s12, s11, {LDS_V}")
        A(f"buffer_load_dwordx4 v{vK}, s[{SRD_K}:{SRD_K+3}], s11 offen lds")
        if c == 0:
            A(f"buffer_load_dwordx4 v[{Q[0]}:{Q[0]+3}], v{vK}, s[{SRD_Q}:{SRD_Q+3}], s14 offen")
            A(f"buffer_load_dwordx4 v[{Q[1]}:{Q[1]+3}], v{vK}, s[{SRD_Q}:{SRD_Q+3}], s14 offen offset:1024")
        A("s_mov_b32 m0, s12")
        A("s_nop 0")
        A(f"buffer_load_dwordx4 v{vK}, s[{SRD_V}:{SRD_V+3}], s11 offen lds")
        if c == 0:
            A("s_barrier")
            pr.stamp()
    srd(A, SRD_O, 4, 5, WS_ACT, ACT_SIZE)
    A(f"v_lshrrev_b32 v{vT0}, 5, v0")
    A(f"v_lshlrev_b32 v{vT0}, 8, v{vT0}")
    A(f"v_and_b32 v{vT1}, 15, v0")
    A(f"v_lshlrev_b32 v{vT1}, 4, v{vT1}")
    A(f"v_add_u32 v{vV}, v{vT0}, v{vT1}")
    A(f"s_lshl_b32 s15, s{sKH}, 15")
    A(f"s_add_u32 s11, s15, {LDS_V}")
    A(f"v_add_u32 v{vV}, s11, v{vV}")
    A(f"s_mov_b32 s{sMaskV}, 0x0000ffff")
    A(f"s_mov_b32 s{sMaskV+1}, 0x0000ffff")
    for b in VB:
        for r in range(8):
            A(f"v_mov_b32 v{b+r}, 0x3f803f80")
    A("s_waitcnt vmcnt(14)")
    A("s_barrier")
    pr.stamp()
    A(f"ds_read_b128 v[{KB[0]}:{KB[0]+3}], v{vK} offset:0")
    A(f"ds_read_b128 v[{KB[1]}:{KB[1]+3}], v{vK} offset:1024")
    A(f"v_add_u32 v{vK}, s15, v{vK}")
    A("s_waitcnt lgkmcnt(1)")
    mfma(A, S[0], KB[0], Q[0], None)
    mfma(A, O[0], KB[0], Q[1], None)
    A("s_waitcnt lgkmcnt(0)")
    mfma(A, S[1], KB[1], Q[0], None)
    mfma(A, O[1], KB[1], Q[1], None)
    A(f"ds_read_b128 v[{KB[0]}:{KB[0]+3}], v{vK} offset:0")
    A(f"s_mov_b64 exec, s[{sMaskV}:{sMaskV+1}]")
    A(f"ds_read_b128 v[{VB[0]}:{VB[0]+3}], v{vV} offset:0")
    A(f"ds_read_b128 v[{VB[0]+4}:{VB[0]+7}], v{vV} offset:512")
    A("s_mov_b64 exec, -1")
    A("s_nop 7")
    A("s_nop 3")
    maxtree(A, vT0, [S[0]+r for r in range(16)] + [S[1]+r for r in range(16)])
    maxtree(A, vT1, [O[0]+r for r in range(16)] + [O[1]+r for r in range(16)])
    for t in (vT0, vT1):
        A(f"v_mov_b32 v{vT2}, v{t}")
        A("s_nop 1")
        A(f"v_permlane32_swap_b32 v{t}, v{vT2}")
        A("s_nop 1")
        A(f"v_max_f32 v{t}, v{t}, v{vT2}")
    A(f"s_mov_b32 s11, {fbits(-BIAS)}")
    A(f"v_sub_f32 v{vT0}, s11, v{vT0}")
    A(f"v_sub_f32 v{vT1}, s11, v{vT1}")
    for r in range(16):
        A(f"v_mov_b32 v{M[0]+r}, v{vT0}")
    A("s_waitcnt lgkmcnt(0)")
    A("s_nop 0")
    mfma(A, S[0], KB[0], Q[0], M[0])
    for r in range(16):
        A(f"v_mov_b32 v{M[1]+r}, v{vT1}")
    for q in range(2):
        for r in range(16):
            A(f"v_mov_b32 v{O[q]+r}, 0")
    pr.stamp()
    if 'prio' in var:
        A(f"s_cmp_ge_u32 s{sW}, 4")
        A(f"s_cbranch_scc0 {name}_noprio")
        A("s_setprio 1")
        A.label(f"{name}_noprio")

    def half(q, i, off, first, last, rdK, rdV):
        cur, oth = S[q], S[1-q]
        ex = lambda r: A(f"v_exp_f32 v{cur+r}, v{cur+r}")
        cv = lambda j: A(f"v_cvt_pk_bf16_f32 v{P+j}, v{cur+2*j}, v{cur+2*j+1}")
        vb = VB[i & 1]
        pvb = VB[i & 1] if q == 1 else VB[(i-1) & 1]
        ex(0)
        if not first: A(f"v_cvt_pk_bf16_f32 v{P+7}, v{oth+14}, v{oth+15}")
        ex(1)
        if q == 0:
            mfma(A, S[1], KB[i & 1], Q[1], M[1])
        elif not last:
            if 'nowait' not in var: A("s_waitcnt lgkmcnt(0)")
            mfma(A, S[0], KB[(i+1) & 1], Q[0], M[0])
        ex(2); cv(0)
        if q == 0 and rdK and 'noread' not in var:
            A(f"ds_read_b128 v[{KB[(i+1)&1]}:{KB[(i+1)&1]+3}], v{vK} offset:{off+1024}")
        ex(3); ex(4); cv(1)
        if not first: mfma(A, O[1-q], pvb+4, P+4, O[1-q])
        ex(5); ex(6); cv(2)
        if q == 1 and rdV and 'noread' not in var:
            vf = VB[(i+1) & 1]
            if 'noexec' not in var: A(f"s_mov_b64 exec, s[{sMaskV}:{sMaskV+1}]")
            A(f"ds_read_b128 v[{vf}:{vf+3}], v{vV} offset:{off+1024}")
            A(f"ds_read_b128 v[{vf+4}:{vf+7}], v{vV} offset:{off+1024+512}")
            if 'noexec' not in var: A("s_mov_b64 exec, -1")
        ex(7); ex(8); cv(3); ex(9)
        if q == 0 and 'nowait' not in var: A(f"s_waitcnt lgkmcnt({1 if rdK else 0})")
        ex(10)
        mfma(A, O[q], vb, P, O[q])
        cv(4); ex(11); ex(12); cv(5); ex(13); ex(14); cv(6); ex(15)
        if q == 1 and last:
            A("s_nop 0")
            A(f"v_cvt_pk_bf16_f32 v{P+7}, v{cur+14}, v{cur+15}")
            A("s_nop 1")
            mfma(A, O[1], vb+4, P+4, O[1])
    def it(i, off, first=False, last=False):
        half(0, i, off, first, False, not last, not last)
        half(1, i, off, False, last, not last, not last)

    it(0, 0, first=True)
    it(1, 1024)
    A("s_waitcnt vmcnt(0)")
    A("s_barrier")
    for i in range(2, 8):
        it(i, i*1024)
    A(f"v_add_u32 v{vK}, 0x2000, v{vK}")
    A(f"v_add_u32 v{vV}, 0x2000, v{vV}")
    A("s_mov_b32 s10, 2")
    L = f"{name}_loop"
    A.raw(".p2align 6")
    A.label(L)
    for i in range(8):
        it(i, i*1024)
    A(f"v_add_u32 v{vK}, 0x2000, v{vK}")
    A(f"v_add_u32 v{vV}, 0x2000, v{vV}")
    A("s_sub_u32 s10, s10, 1")
    A("s_cmp_lg_u32 s10, 0")
    A(f"s_cbranch_scc1 {L}")
    for i in range(8):
        it(i, i*1024, last=(i == 7))
    pr.stamp()
    A("s_nop 7")
    A("s_nop 3")
    A(f"s_lshl_b32 s11, s17, 1")
    A(f"s_xor_b32 s12, s{sKH}, 1")
    A("s_add_u32 s12, s11, s12")
    A(f"s_mul_i32 s12, s12, {9*256}")
    A(f"s_add_u32 s12, s12, {LDS_X}")
    A(f"s_add_u32 s13, s11, s{sKH}")
    A(f"s_mul_i32 s13, s13, {9*256}")
    A(f"s_add_u32 s13, s13, {LDS_X}")
    A(f"v_lshlrev_b32 v{vT2}, 2, v0")
    A(f"v_add_u32 v{vT0}, s12, v{vT2}")
    A(f"v_add_u32 v{vT1}, s13, v{vT2}")
    A(f"s_cmp_eq_u32 s{sKH}, 0")
    A(f"s_cbranch_scc1 {name}_k0")
    for r in range(9):
        A(f"ds_write_b32 v{vT0}, v{O[0]+r} offset:{r*256}")
    for r in range(9):
        A(f"v_mov_b32 v{O[0]+r}, v{O[1]+r}")
    for r in range(4):
        A(f"v_mov_b32 v{Q[0]+r}, v{Q[1]+r}")
    A(f"s_branch {name}_k1")
    A.label(f"{name}_k0")
    for r in range(9):
        A(f"ds_write_b32 v{vT0}, v{O[1]+r} offset:{r*256}")
    A.label(f"{name}_k1")
    A("s_waitcnt lgkmcnt(0)")
    A("s_barrier")
    for r in range(9):
        A(f"ds_read_b32 v{S[0]+r}, v{vT1} offset:{r*256}")
    A("s_waitcnt lgkmcnt(0)")
    OO = O[0]
    for r in range(9):
        A(f"v_add_f32 v{OO+r}, v{OO+r}, v{S[0]+r}")
    A(f"s_mov_b32 s10, {fbits(2.0**120)}")
    A(f"v_cmp_lt_f32 s[12:13], v{OO+8}, s10")
    A(f"v_max3_f32 v{vT0}, |v{OO}|, |v{OO+1}|, |v{OO+2}|")
    A(f"v_max3_f32 v{vT0}, v{vT0}, |v{OO+3}|, |v{OO+4}|")
    A(f"v_max3_f32 v{vT0}, v{vT0}, |v{OO+5}|, |v{OO+6}|")
    A(f"v_max_f32 v{vT0}, v{vT0}, |v{OO+7}|")
    A(f"s_mov_b32 s10, {fbits(2.0**-102)}")
    A(f"v_cmp_gt_f32 s[14:15], v{vT0}, s10")
    A("s_and_b64 s[12:13], s[12:13], s[14:15]")
    A("s_mov_b32 s10, 0x1f8")
    for r in range(8):
        A(f"v_cmp_class_f32 s[14:15], v{OO+r}, s10")
        A("s_nop 0")
        A("s_and_b64 s[12:13], s[12:13], s[14:15]")
    A("s_cmp_eq_u64 s[12:13], -1")
    if 'nocheck' in var: A(f"s_branch {name}_fin")
    A(f"s_cbranch_scc1 {name}_fin")
    A(f"v_lshlrev_b32 v{vK}, 4, v0")
    A(f"v_lshrrev_b32 v{vT0}, 5, v0")
    A(f"v_lshlrev_b32 v{vT0}, 8, v{vT0}")
    A(f"v_and_b32 v{vT1}, 15, v0")
    A(f"v_lshlrev_b32 v{vT1}, 4, v{vT1}")
    A(f"v_add_u32 v{vV}, v{vT0}, v{vT1}")
    A(f"v_add_u32 v{vV}, {LDS_V}, v{vV}")
    for r in range(16):
        A(f"v_mov_b32 v{OO+r}, 0")
    A(f"v_mov_b32 v{vM}, 0xff800000")
    A("s_mov_b32 s10, 64")
    LF = f"{name}_fb"
    A.label(LF)
    A(f"ds_read_b128 v[{KB[0]}:{KB[0]+3}], v{vK}")
    A(f"s_mov_b64 exec, s[{sMaskV}:{sMaskV+1}]")
    A(f"ds_read_b128 v[{VB[0]}:{VB[0]+3}], v{vV} offset:0")
    A(f"ds_read_b128 v[{VB[0]+4}:{VB[0]+7}], v{vV} offset:512")
    A("s_mov_b64 exec, -1")
    A("s_waitcnt lgkmcnt(0)")
    cur = S[0]
    mfma(A, cur, KB[0], Q[0], None)
    A("s_nop 7")
    A("s_nop 7")
    maxtree(A, vT0, [cur+r for r in range(16)])
    A(f"v_mov_b32 v{vT1}, v{vT0}")
    A("s_nop 1")
    A(f"v_permlane32_swap_b32 v{vT0}, v{vT1}")
    A("s_nop 1")
    A(f"v_max3_f32 v{vT0}, v{vT0}, v{vT1}, v{vM}")
    A(f"v_sub_f32 v{vT1}, v{vM}, v{vT0}")
    A(f"v_exp_f32 v{vT1}, v{vT1}")
    A(f"v_mov_b32 v{vM}, v{vT0}")
    for r in range(9):
        A(f"v_mul_f32 v{OO+r}, v{OO+r}, v{vT1}")
    for r in range(16):
        A(f"v_sub_f32 v{cur+r}, v{cur+r}, v{vM}")
    for r in range(16):
        A(f"v_exp_f32 v{cur+r}, v{cur+r}")
    A("s_nop 0")
    for j in range(8):
        A(f"v_cvt_pk_bf16_f32 v{P+j}, v{cur+2*j}, v{cur+2*j+1}")
    A("s_nop 1")
    mfma(A, OO, VB[0], P, OO)
    mfma(A, OO, VB[0]+4, P+4, OO)
    A(f"v_add_u32 v{vK}, 0x400, v{vK}")
    A(f"v_add_u32 v{vV}, 0x400, v{vV}")
    A("s_nop 7")
    A("s_nop 7")
    A("s_sub_u32 s10, s10, 1")
    A("s_cmp_lg_u32 s10, 0")
    A(f"s_cbranch_scc1 {LF}")
    A.label(f"{name}_fin")
    A(f"v_rcp_f32 v{vT0}, v{OO+8}")
    A(f"s_add_u32 s10, s{sTT}, s{sKH}")
    A(f"s_mul_i32 s10, s10, {ACT_TILE}")
    A(f"s_lshl_b32 s11, s{sH}, 10")
    for r in range(8):
        A(f"v_mul_f32 v{OO+r}, v{OO+r}, v{vT0}")
    A("s_add_u32 s10, s10, s11")
    for j in range(4):
        A(f"v_cvt_pk_bf16_f32 v{P+j}, v{OO+2*j}, v{OO+2*j+1}")
    A(f"v_lshlrev_b32 v{vT1}, 4, v0")
    A(f"buffer_store_dwordx4 v[{P}:{P+3}], v{vT1}, s[{SRD_O}:{SRD_O+3}], s10 offen")
    pr.finish(4, 5, sW, vT0, vT1, 30 << 20)
    A.label(f"{name}_end")
    A("s_endpgm")
    return dict(name=name, nv=NV, accum=NV, lds=131072 + 8*9*256, block=512, grid=256)
```

```python
from asm import *
import struct
def fbits(f): return hex(struct.unpack('<I', struct.pack('<f', f))[0])

BIAS = 90.0

from k2b import Prof, maxtree, mfma

WS_YF = WS_Y

def gen_k2(A, name="attn_kernel", prof=False, var=""):
    kernel_header(A, name)
    vK, vV, vT0, vT1, vT2, vM = 1, 2, 3, 4, 5, 6
    Q = [8, 12]; KB = [16, 20]; VB = [24, 32]; P = 40
    S = [48, 64]; O = [80, 96]; M = [112, 128]
    NV = 144
    sW, sH, sQB, sTT, sKH = 20, 21, 22, 23, 16
    SRD_Q, SRD_K, SRD_V, SRD_O = 24, 28, 32, 36
    sMaskV = 40
    LDS_V, LDS_R = 65536, 131072
    LDS_X = LDS_V
    pr = Prof(A, prof)
    A("s_cmp_ge_u32 s2, 256")
    A(f"s_cbranch_scc1 {name}_end")
    pr.begin()
    A(f"s_load_dwordx2 s[4:5], s[0:1], {KA_WS}")
    A(f"s_load_dwordx4 s[48:51], s[0:1], {KA_W2}")
    A(f"s_load_dwordx2 s[46:47], s[0:1], {KA_X}")
    A(f"v_lshrrev_b32 v{vT0}, 6, v0")
    A("v_and_b32 v0, 63, v0")
    A(f"v_readfirstlane_b32 s{sW}, v{vT0}")
    A(f"s_and_b32 s{sH}, s2, 7")
    A(f"s_lshl_b32 s{sH}, s{sH}, 2")
    A("s_bfe_u32 s3, s2, 0x20003")
    A(f"s_add_u32 s{sH}, s{sH}, s3")
    A(f"s_lshr_b32 s{sQB}, s2, 5")
    A(f"v_lshlrev_b32 v{vK}, 4, v0")
    A(f"s_lshr_b32 s{sKH}, s{sW}, 2")
    A(f"s_and_b32 s17, s{sW}, 3")
    A(f"s_lshl_b32 s10, s{sKH}, 5")
    A("s_add_u32 s10, s10, s17")
    A("s_lshl_b32 s10, s10, 10")
    A(f"s_lshl_b32 s{sTT}, s{sQB}, 3")
    A("s_lshl_b32 s18, s17, 1")
    A(f"s_add_u32 s{sTT}, s{sTT}, s18")
    A(f"s_lshl_b32 s14, s{sTT}, 10")
    A(f"s_lshl_b32 s6, s{sH}, 16")
    A("s_waitcnt lgkmcnt(0)")
    pr.stamp()
    A(f"s_cmp_ge_u32 s{sW}, 8")
    A(f"s_cbranch_scc1 {name}_gemm")
    A("s_add_u32 s8, s4, s6")
    A("s_addc_u32 s9, s5, 0")
    n_gemm0 = pr.n
    srd(A, SRD_K, 8, 9, WS_K, 65536)
    srd(A, SRD_V, 8, 9, WS_V, 65536)
    srd(A, SRD_Q, 8, 9, WS_Q, 65536)
    for c in range(8):
        A(f"s_add_u32 s11, s10, {c*4096}")
        A("s_mov_b32 m0, s11")
        A(f"s_add_u32 s12, s11, {LDS_V}")
        A(f"buffer_load_dwordx4 v{vK}, s[{SRD_K}:{SRD_K+3}], s11 offen lds")
        if c == 0:
            A(f"buffer_load_dwordx4 v[{Q[0]}:{Q[0]+3}], v{vK}, s[{SRD_Q}:{SRD_Q+3}], s14 offen")
            A(f"buffer_load_dwordx4 v[{Q[1]}:{Q[1]+3}], v{vK}, s[{SRD_Q}:{SRD_Q+3}], s14 offen offset:1024")
        A("s_mov_b32 m0, s12")
        A("s_nop 0")
        A(f"buffer_load_dwordx4 v{vK}, s[{SRD_V}:{SRD_V+3}], s11 offen lds")
        if c == 0:
            A("s_barrier")
            pr.stamp()
    srd(A, SRD_O, 4, 5, WS_ACT, ACT_SIZE)
    A(f"v_lshrrev_b32 v{vT0}, 5, v0")
    A(f"v_lshlrev_b32 v{vT0}, 8, v{vT0}")
    A(f"v_and_b32 v{vT1}, 15, v0")
    A(f"v_lshlrev_b32 v{vT1}, 4, v{vT1}")
    A(f"v_add_u32 v{vV}, v{vT0}, v{vT1}")
    A(f"s_lshl_b32 s15, s{sKH}, 15")
    A(f"s_add_u32 s11, s15, {LDS_V}")
    A(f"v_add_u32 v{vV}, s11, v{vV}")
    A(f"s_mov_b32 s{sMaskV}, 0x0000ffff")
    A(f"s_mov_b32 s{sMaskV+1}, 0x0000ffff")
    for b in VB:
        for r in range(8):
            A(f"v_mov_b32 v{b+r}, 0x3f803f80")
    A("s_waitcnt vmcnt(14)")
    A("s_barrier")
    pr.stamp()
    A(f"ds_read_b128 v[{KB[0]}:{KB[0]+3}], v{vK} offset:0")
    A(f"ds_read_b128 v[{KB[1]}:{KB[1]+3}], v{vK} offset:1024")
    A(f"v_add_u32 v{vK}, s15, v{vK}")
    A("s_waitcnt lgkmcnt(1)")
    mfma(A, S[0], KB[0], Q[0], None)
    mfma(A, O[0], KB[0], Q[1], None)
    A("s_waitcnt lgkmcnt(0)")
    mfma(A, S[1], KB[1], Q[0], None)
    mfma(A, O[1], KB[1], Q[1], None)
    A(f"ds_read_b128 v[{KB[0]}:{KB[0]+3}], v{vK} offset:0")
    A(f"s_mov_b64 exec, s[{sMaskV}:{sMaskV+1}]")
    A(f"ds_read_b128 v[{VB[0]}:{VB[0]+3}], v{vV} offset:0")
    A(f"ds_read_b128 v[{VB[0]+4}:{VB[0]+7}], v{vV} offset:512")
    A("s_mov_b64 exec, -1")
    A("s_nop 7")
    A("s_nop 3")
    maxtree(A, vT0, [S[0]+r for r in range(16)] + [S[1]+r for r in range(16)])
    maxtree(A, vT1, [O[0]+r for r in range(16)] + [O[1]+r for r in range(16)])
    for t in (vT0, vT1):
        A(f"v_mov_b32 v{vT2}, v{t}")
        A("s_nop 1")
        A(f"v_permlane32_swap_b32 v{t}, v{vT2}")
        A("s_nop 1")
        A(f"v_max_f32 v{t}, v{t}, v{vT2}")
    A(f"s_mov_b32 s11, {fbits(-BIAS)}")
    A(f"v_sub_f32 v{vT0}, s11, v{vT0}")
    A(f"v_sub_f32 v{vT1}, s11, v{vT1}")
    for r in range(16):
        A(f"v_mov_b32 v{M[0]+r}, v{vT0}")
    A("s_waitcnt lgkmcnt(0)")
    A("s_nop 0")
    mfma(A, S[0], KB[0], Q[0], M[0])
    for r in range(16):
        A(f"v_mov_b32 v{M[1]+r}, v{vT1}")
    for q in range(2):
        for r in range(16):
            A(f"v_mov_b32 v{O[q]+r}, 0")
    pr.stamp()
    if 'prio' in var:
        A(f"s_cmp_ge_u32 s{sW}, 4")
        A(f"s_cbranch_scc0 {name}_noprio")
        A("s_setprio 1")
        A.label(f"{name}_noprio")

    def half(q, i, off, first, last, rdK, rdV):
        cur, oth = S[q], S[1-q]
        ex = lambda r: A(f"v_exp_f32 v{cur+r}, v{cur+r}")
        cv = lambda j: A(f"v_cvt_pk_bf16_f32 v{P+j}, v{cur+2*j}, v{cur+2*j+1}")
        vb = VB[i & 1]
        pvb = VB[i & 1] if q == 1 else VB[(i-1) & 1]
        ex(0)
        if not first: A(f"v_cvt_pk_bf16_f32 v{P+7}, v{oth+14}, v{oth+15}")
        ex(1)
        if q == 0:
            mfma(A, S[1], KB[i & 1], Q[1], M[1])
        elif not last:
            if 'nowait' not in var: A("s_waitcnt lgkmcnt(0)")
            mfma(A, S[0], KB[(i+1) & 1], Q[0], M[0])
        ex(2); cv(0)
        if q == 0 and rdK and 'noread' not in var:
            A(f"ds_read_b128 v[{KB[(i+1)&1]}:{KB[(i+1)&1]+3}], v{vK} offset:{off+1024}")
        ex(3); ex(4); cv(1)
        if not first: mfma(A, O[1-q], pvb+4, P+4, O[1-q])
        ex(5); ex(6); cv(2)
        if q == 1 and rdV and 'noread' not in var:
            vf = VB[(i+1) & 1]
            if 'noexec' not in var: A(f"s_mov_b64 exec, s[{sMaskV}:{sMaskV+1}]")
            A(f"ds_read_b128 v[{vf}:{vf+3}], v{vV} offset:{off+1024}")
            A(f"ds_read_b128 v[{vf+4}:{vf+7}], v{vV} offset:{off+1024+512}")
            if 'noexec' not in var: A("s_mov_b64 exec, -1")
        ex(7); ex(8); cv(3); ex(9)
        if q == 0 and 'nowait' not in var: A(f"s_waitcnt lgkmcnt({1 if rdK else 0})")
        ex(10)
        mfma(A, O[q], vb, P, O[q])
        cv(4); ex(11); ex(12); cv(5); ex(13); ex(14); cv(6); ex(15)
        if q == 1 and last:
            A("s_nop 0")
            A(f"v_cvt_pk_bf16_f32 v{P+7}, v{cur+14}, v{cur+15}")
            A("s_nop 1")
            mfma(A, O[1], vb+4, P+4, O[1])
    def it(i, off, first=False, last=False):
        half(0, i, off, first, False, not last, not last)
        half(1, i, off, False, last, not last, not last)

    it(0, 0, first=True)
    it(1, 1024)
    A("s_waitcnt vmcnt(0)")
    A("s_barrier")
    for i in range(2, 8):
        it(i, i*1024)
    A(f"v_add_u32 v{vK}, 0x2000, v{vK}")
    A(f"v_add_u32 v{vV}, 0x2000, v{vV}")
    A("s_mov_b32 s10, 2")
    L = f"{name}_loop"
    A.raw(".p2align 6")
    A.label(L)
    for i in range(8):
        it(i, i*1024)
    A(f"v_add_u32 v{vK}, 0x2000, v{vK}")
    A(f"v_add_u32 v{vV}, 0x2000, v{vV}")
    A("s_sub_u32 s10, s10, 1")
    A("s_cmp_lg_u32 s10, 0")
    A(f"s_cbranch_scc1 {L}")
    for i in range(8):
        it(i, i*1024, last=(i == 7))
    pr.stamp()
    A("s_barrier")
    A("s_nop 7")
    A(f"s_lshl_b32 s11, s17, 1")
    A(f"s_xor_b32 s12, s{sKH}, 1")
    A("s_add_u32 s12, s11, s12")
    A(f"s_mul_i32 s12, s12, {9*256}")
    A(f"s_add_u32 s12, s12, {LDS_X}")
    A(f"s_add_u32 s13, s11, s{sKH}")
    A(f"s_mul_i32 s13, s13, {9*256}")
    A(f"s_add_u32 s13, s13, {LDS_X}")
    A(f"v_lshlrev_b32 v{vT2}, 2, v0")
    A(f"v_add_u32 v{vT0}, s12, v{vT2}")
    A(f"v_add_u32 v{vT1}, s13, v{vT2}")
    A(f"s_cmp_eq_u32 s{sKH}, 0")
    A(f"s_cbranch_scc1 {name}_k0")
    for r in range(9):
        A(f"ds_write_b32 v{vT0}, v{O[0]+r} offset:{r*256}")
    for r in range(9):
        A(f"v_mov_b32 v{O[0]+r}, v{O[1]+r}")
    for r in range(4):
        A(f"v_mov_b32 v{Q[0]+r}, v{Q[1]+r}")
    A(f"s_branch {name}_k1")
    A.label(f"{name}_k0")
    for r in range(9):
        A(f"ds_write_b32 v{vT0}, v{O[1]+r} offset:{r*256}")
    A.label(f"{name}_k1")
    A("s_waitcnt lgkmcnt(0)")
    A("s_barrier")
    for r in range(9):
        A(f"ds_read_b32 v{S[0]+r}, v{vT1} offset:{r*256}")
    A("s_waitcnt lgkmcnt(0)")
    OO = O[0]
    for r in range(9):
        A(f"v_add_f32 v{OO+r}, v{OO+r}, v{S[0]+r}")
    A(f"s_mov_b32 s10, {fbits(2.0**120)}")
    A(f"v_cmp_lt_f32 s[12:13], v{OO+8}, s10")
    A(f"v_max3_f32 v{vT0}, |v{OO}|, |v{OO+1}|, |v{OO+2}|")
    A(f"v_max3_f32 v{vT0}, v{vT0}, |v{OO+3}|, |v{OO+4}|")
    A(f"v_max3_f32 v{vT0}, v{vT0}, |v{OO+5}|, |v{OO+6}|")
    A(f"v_max_f32 v{vT0}, v{vT0}, |v{OO+7}|")
    A(f"s_mov_b32 s10, {fbits(2.0**-102)}")
    A(f"v_cmp_gt_f32 s[14:15], v{vT0}, s10")
    A("s_and_b64 s[12:13], s[12:13], s[14:15]")
    A("s_mov_b32 s10, 0x1f8")
    for r in range(8):
        A(f"v_cmp_class_f32 s[14:15], v{OO+r}, s10")
        A("s_nop 0")
        A("s_and_b64 s[12:13], s[12:13], s[14:15]")
    A("s_cmp_eq_u64 s[12:13], -1")
    if 'nocheck' in var: A(f"s_branch {name}_fin")
    A(f"s_cbranch_scc1 {name}_fin")
    A(f"v_lshlrev_b32 v{vK}, 4, v0")
    A(f"v_lshrrev_b32 v{vT0}, 5, v0")
    A(f"v_lshlrev_b32 v{vT0}, 8, v{vT0}")
    A(f"v_and_b32 v{vT1}, 15, v0")
    A(f"v_lshlrev_b32 v{vT1}, 4, v{vT1}")
    A(f"v_add_u32 v{vV}, v{vT0}, v{vT1}")
    for r in range(16):
        A(f"v_mov_b32 v{OO+r}, 0")
    A(f"v_mov_b32 v{vM}, 0xff800000")
    A("s_mov_b32 s10, 0")
    LF = f"{name}_fb"
    A.label(LF)
    A(f"buffer_load_dwordx4 v[{KB[0]}:{KB[0]+3}], v{vK}, s[{SRD_K}:{SRD_K+3}], s10 offen")
    A(f"s_mov_b64 exec, s[{sMaskV}:{sMaskV+1}]")
    A(f"buffer_load_dwordx4 v[{VB[0]}:{VB[0]+3}], v{vV}, s[{SRD_V}:{SRD_V+3}], s10 offen")
    A(f"buffer_load_dwordx4 v[{VB[0]+4}:{VB[0]+7}], v{vV}, s[{SRD_V}:{SRD_V+3}], s10 offen offset:512")
    A("s_mov_b64 exec, -1")
    A("s_waitcnt vmcnt(0)")
    cur = S[0]
    mfma(A, cur, KB[0], Q[0], None)
    A("s_nop 7")
    A("s_nop 7")
    maxtree(A, vT0, [cur+r for r in range(16)])
    A(f"v_mov_b32 v{vT1}, v{vT0}")
    A("s_nop 1")
    A(f"v_permlane32_swap_b32 v{vT0}, v{vT1}")
    A("s_nop 1")
    A(f"v_max3_f32 v{vT0}, v{vT0}, v{vT1}, v{vM}")
    A(f"v_sub_f32 v{vT1}, v{vM}, v{vT0}")
    A(f"v_exp_f32 v{vT1}, v{vT1}")
    A(f"v_mov_b32 v{vM}, v{vT0}")
    for r in range(9):
        A(f"v_mul_f32 v{OO+r}, v{OO+r}, v{vT1}")
    for r in range(16):
        A(f"v_sub_f32 v{cur+r}, v{cur+r}, v{vM}")
    for r in range(16):
        A(f"v_exp_f32 v{cur+r}, v{cur+r}")
    A("s_nop 0")
    for j in range(8):
        A(f"v_cvt_pk_bf16_f32 v{P+j}, v{cur+2*j}, v{cur+2*j+1}")
    A("s_nop 1")
    mfma(A, OO, VB[0], P, OO)
    mfma(A, OO, VB[0]+4, P+4, OO)
    A("s_nop 7")
    A("s_nop 7")
    A("s_add_u32 s10, s10, 1024")
    A("s_cmp_lt_u32 s10, 65536")
    A(f"s_cbranch_scc1 {LF}")
    A.label(f"{name}_fin")
    A(f"v_rcp_f32 v{vT0}, v{OO+8}")
    A(f"s_add_u32 s10, s{sTT}, s{sKH}")
    A(f"s_mul_i32 s10, s10, {ACT_TILE}")
    A(f"s_lshl_b32 s11, s{sH}, 10")
    for r in range(8):
        A(f"v_mul_f32 v{OO+r}, v{OO+r}, v{vT0}")
    A("s_add_u32 s10, s10, s11")
    for j in range(4):
        A(f"v_cvt_pk_bf16_f32 v{P+j}, v{OO+2*j}, v{OO+2*j+1}")
    A(f"v_lshlrev_b32 v{vT1}, 4, v0")
    A(f"buffer_store_dwordx4 v[{P}:{P+3}], v{vT1}, s[{SRD_O}:{SRD_O+3}], s10 offen")
    n_fin = pr.n
    A(f"s_branch {name}_done")
    A.label(f"{name}_gemm")
    depth, nsteps = 4, 28
    SRD_ACT, SRD_W2, SRD_X, SRD_B2, SRD_Y = 24, 28, 32, 36, 56
    sG, sTB, sNB, sA0, sA1, sWs, sRing = 16, 17, 18, 19, 42, 43, 45
    gT = [1, 2, 3, 4, 5]
    vL16, vWd = 6, 7
    vWr = [8, 9]
    ACC = [16, 32, 48, 64]
    WF = [[80, 84], [88, 92]]
    AF = [[96 + 8*d, 100 + 8*d] for d in range(depth)]
    A(f"s_setprio {0 if 'gp0' in var else 1 if 'gp1' in var else 3 if 'gp3' in var else 2}")
    A(f"s_sub_u32 s{sG}, s{sW}, 8")
    A(f"s_lshr_b32 s{sTB}, s{sH}, 3")
    A(f"s_lshl_b32 s11, s{sQB}, 2")
    A(f"s_add_u32 s{sTB}, s{sTB}, s11")
    A(f"s_and_b32 s{sNB}, s{sH}, 7")
    srd(A, SRD_ACT, 4, 5, WS_ACT, ACT_SIZE)
    srd(A, SRD_W2, 48, 49, 0, 1792*1024)
    A(f"v_lshlrev_b32 v{vL16}, 4, v0")
    A(f"v_lshrrev_b32 v{gT[0]}, 3, v0")
    A(f"v_and_b32 v{gT[1]}, 7, v0")
    A(f"v_bfe_u32 v{gT[2]}, v0, 4, 1")
    A(f"v_lshlrev_b32 v{gT[2]}, 2, v{gT[2]}")
    A(f"v_xor_b32 v{gT[1]}, v{gT[1]}, v{gT[2]}")
    A(f"v_lshlrev_b32 v{gT[1]}, 4, v{gT[1]}")
    A(f"v_lshl_add_u32 v{vWd}, v{gT[0]}, 10, v{gT[1]}")
    A(f"s_lshl_b32 s{sRing}, s{sG}, 13")
    A(f"s_add_u32 s{sRing}, s{sRing}, {LDS_R}")
    A(f"v_and_b32 v{gT[0]}, 15, v0")
    A(f"v_lshrrev_b32 v{gT[0]}, 2, v{gT[0]}")
    A(f"v_lshrrev_b32 v{gT[1]}, 5, v0")
    A(f"v_lshl_add_u32 v{gT[1]}, v{gT[1]}, 2, v{gT[0]}")
    A(f"v_lshlrev_b32 v{gT[1]}, 7, v{gT[1]}")
    A(f"v_lshrrev_b32 v{gT[0]}, 1, v{gT[0]}")
    A(f"v_lshl_add_u32 v{gT[1]}, v{gT[0]}, 6, v{gT[1]}")
    A(f"v_bfe_u32 v{gT[0]}, v0, 4, 1")
    A(f"v_lshl_add_u32 v{gT[1]}, v{gT[0]}, 5, v{gT[1]}")
    A(f"v_and_b32 v{gT[0]}, 3, v0")
    A(f"v_lshl_add_u32 v{gT[1]}, v{gT[0]}, 3, v{gT[1]}")
    A(f"v_add_u32 v{vWr[0]}, s{sRing}, v{gT[1]}")
    A(f"v_xor_b32 v{vWr[1]}, 64, v{vWr[0]}")
    A(f"s_mul_i32 s{sA0}, s{sTB}, {2*ACT_TILE}")
    A(f"s_mul_i32 s11, s{sG}, {nsteps*1024}")
    A(f"s_add_u32 s{sA0}, s{sA0}, s11")
    A(f"s_add_u32 s{sA0}, s{sA0}, {32*1024}")
    A(f"s_add_u32 s{sA1}, s{sA0}, {ACT_TILE}")
    A(f"s_mul_i32 s{sWs}, s{sG}, {nsteps*16*1024}")
    A(f"s_lshl_b32 s11, s{sNB}, 7")
    A(f"s_add_u32 s{sWs}, s{sWs}, s11")
    def issue(i):
        d = i % depth
        A(f"s_add_u32 m0, s{sRing}, {d*2048}")
        A(f"buffer_load_dwordx4 v[{AF[d][0]}:{AF[d][0]+3}], v{vL16}, s[{SRD_ACT}:{SRD_ACT+3}], s{sA0} offen")
        A(f"buffer_load_dwordx4 v{vWd}, s[{SRD_W2}:{SRD_W2+3}], s{sWs} offen lds")
        A(f"s_add_u32 m0, s{sRing}, {d*2048 + 1024}")
        A(f"s_add_u32 s{sWs}, s{sWs}, 8192")
        A(f"buffer_load_dwordx4 v[{AF[d][1]}:{AF[d][1]+3}], v{vL16}, s[{SRD_ACT}:{SRD_ACT+3}], s{sA1} offen")
        A(f"buffer_load_dwordx4 v{vWd}, s[{SRD_W2}:{SRD_W2+3}], s{sWs} offen lds")
        A(f"s_add_u32 s{sWs}, s{sWs}, 8192")
        A(f"s_add_u32 s{sA0}, s{sA0}, 1024")
        A(f"s_add_u32 s{sA1}, s{sA1}, 1024")
    def wreads(i):
        d = i % depth; b = i & 1
        for u in range(2):
            for t in range(2):
                A(f"ds_read_b64_tr_b16 v[{WF[b][u]+2*t}:{WF[b][u]+2*t+1}], v{vWr[u]} offset:{d*2048 + t*1024}")
    def issue_parts(i):
        d = i % depth
        return [
            [f"s_add_u32 m0, s{sRing}, {d*2048}",
             f"buffer_load_dwordx4 v[{AF[d][0]}:{AF[d][0]+3}], v{vL16}, s[{SRD_ACT}:{SRD_ACT+3}], s{sA0} offen"],
            [f"buffer_load_dwordx4 v{vWd}, s[{SRD_W2}:{SRD_W2+3}], s{sWs} offen lds",
             f"s_add_u32 m0, s{sRing}, {d*2048 + 1024}",
             f"s_add_u32 s{sWs}, s{sWs}, 8192"],
            [f"buffer_load_dwordx4 v[{AF[d][1]}:{AF[d][1]+3}], v{vL16}, s[{SRD_ACT}:{SRD_ACT+3}], s{sA1} offen",
             f"buffer_load_dwordx4 v{vWd}, s[{SRD_W2}:{SRD_W2+3}], s{sWs} offen lds"],
            [f"s_add_u32 s{sWs}, s{sWs}, 8192", f"s_add_u32 s{sA0}, s{sA0}, 1024", f"s_add_u32 s{sA1}, s{sA1}, 1024"]]
    def step(i, n_after, more):
        d = i % depth; b = i & 1
        if n_after is not None:
            A(f"s_waitcnt vmcnt({4*n_after})")
            wreads(i + 1)
            A("s_waitcnt lgkmcnt(4)")
        else:
            A("s_waitcnt lgkmcnt(0)")
        if 'nogm' in var:
            if more: issue(i)
            return
        if 'il' in var:
            parts = issue_parts(i) if more else [[], [], [], []]
            mfma(A, ACC[0], WF[b][0], AF[d][0], ACC[0])
            mfma(A, ACC[1], WF[b][1], AF[d][0], ACC[1])
            for x in parts[0] + parts[1]: A(x)
            mfma(A, ACC[2], WF[b][0], AF[d][1], ACC[2])
            mfma(A, ACC[3], WF[b][1], AF[d][1], ACC[3])
            for x in parts[2] + parts[3]: A(x)
            return
        for tt in range(2):
            for u in range(2):
                mfma(A, ACC[tt*2+u], WF[b][u], AF[d][tt], ACC[tt*2+u])
        if more: issue(i)
    A("s_barrier")
    A("s_barrier")
    for i in range(depth): issue(i)
    for t in range(4):
        for r in range(16): A(f"v_mov_b32 v{ACC[t]+r}, 0")
    A("s_barrier")
    pr.n = n_gemm0
    pr.stamp(); pr.stamp(); pr.stamp()
    A(f"s_waitcnt vmcnt({4*(depth-1)})")
    wreads(0)
    A(f"s_mov_b32 s10, {nsteps//depth - 1}")
    LG = f"{name}_gloop"
    A.label(LG)
    for i in range(depth): step(i, depth - 2, True)
    A("s_sub_u32 s10, s10, 1")
    A("s_cmp_lg_u32 s10, 0")
    A(f"s_cbranch_scc1 {LG}")
    for i in range(depth): step(i, (depth - 2 - i) if i < depth - 1 else None, False)
    pr.stamp()
    srd(A, SRD_X, 46, 47, 0, 2048*1024)
    srd(A, SRD_B2, 50, 51, 0, 1024)
    srd(A, SRD_Y, 4, 5, WS_YF, 2048*512*4)
    A(f"s_lshr_b32 s11, s{sG}, 1")
    A(f"s_lshl_b32 s12, s{sTB}, 1")
    A("s_add_u32 s11, s11, s12")
    A("s_lshl_b32 s11, s11, 15")
    A(f"s_and_b32 s12, s{sG}, 1")
    A("s_lshl_b32 s12, s12, 6")
    A(f"s_lshl_b32 s13, s{sNB}, 7")
    A("s_add_u32 s12, s12, s13")
    A("s_add_u32 s11, s11, s12")
    A(f"v_and_b32 v{gT[1]}, 31, v0")
    A(f"v_lshlrev_b32 v{gT[1]}, 10, v{gT[1]}")
    A(f"v_lshrrev_b32 v{gT[2]}, 5, v0")
    A(f"v_lshlrev_b32 v{gT[3]}, 3, v{gT[2]}")
    A(f"v_add_u32 v{gT[4]}, v{gT[1]}, v{gT[3]}")
    XR, BR = 96, 104
    vR2 = 112
    if 'defer' in var:
        from k1p import WS_RD
        srd(A, 60, 4, 5, WS_RD, 8192)
        A(f"s_lshr_b32 s13, s{sG}, 1")
        A(f"s_lshl_b32 s14, s{sTB}, 1")
        A("s_add_u32 s13, s13, s14")
        A("s_lshl_b32 s13, s13, 7")
        A(f"v_and_b32 v{gT[0]}, 31, v0")
        A(f"v_lshlrev_b32 v{gT[0]}, 2, v{gT[0]}")
        A(f"buffer_load_dword v{vR2}, v{gT[0]}, s[60:63], s13 offen")
    for q in range(4):
        A(f"buffer_load_dwordx2 v[{XR+2*q}:{XR+2*q+1}], v{gT[4]}, s[{SRD_X}:{SRD_X+3}], s11 offen offset:{16*q}")
        A(f"buffer_load_dwordx2 v[{BR+2*q}:{BR+2*q+1}], v{gT[3]}, s[{SRD_B2}:{SRD_B2+3}], s12 offen offset:{16*q}")
    A("s_barrier")
    A(f"s_lshl_b32 s13, s{sG}, 14")
    A(f"v_add_u32 v{gT[0]}, s13, v{vL16}")
    for t in range(4):
        for g in range(4):
            A(f"ds_write_b128 v{gT[0]}, v[{ACC[t]+4*g}:{ACC[t]+4*g+3}] offset:{(t*4+g)*1024}")
    A("s_waitcnt lgkmcnt(0)")
    A("s_barrier")
    A(f"s_lshl_b32 s13, s{sG}, 12")
    A(f"v_add_u32 v{gT[0]}, s13, v{vL16}")
    R = 16
    for p in range(4):
        for q in range(4):
            A(f"ds_read_b128 v[{R+(p*4+q)*4}:{R+(p*4+q)*4+3}], v{gT[0]} offset:{p*16384 + q*1024}")
    for p in range(1, 4):
        A(f"s_waitcnt lgkmcnt({12 - 4*p})")
        for r in range(16):
            A(f"v_add_f32 v{R+r}, v{R+r}, v{R+p*16+r}")
    A("s_waitcnt vmcnt(0)")
    if 'defer' in var:
        A(f"v_mul_f32 v{vR2}, v{vR2}, v{vR2}")
        for r in range(16): A(f"v_mul_f32 v{R+r}, v{R+r}, v{vR2}")
    for q in range(4):
        for j in range(2):
            for src in (XR, BR):
                reg = src + 2*q + j
                A(f"v_lshlrev_b32 v{gT[0]}, 16, v{reg}")
                A(f"v_and_b32 v{vWd}, 0xffff0000, v{reg}")
                A(f"v_add_f32 v{R+4*q+2*j}, v{R+4*q+2*j}, v{gT[0]}")
                A(f"v_add_f32 v{R+4*q+2*j+1}, v{R+4*q+2*j+1}, v{vWd}")
    A(f"s_lshl_b32 s11, s{sTB}, 3")
    A(f"s_add_u32 s11, s11, s{sNB}")
    A("s_lshl_b32 s11, s11, 2")
    A(f"s_add_u32 s11, s11, s{sG}")
    A("s_lshl_b32 s11, s11, 12")
    for q in range(4):
        A(f"buffer_store_dwordx4 v[{R+4*q}:{R+4*q+3}], v{vL16}, s[{SRD_Y}:{SRD_Y+3}], s11 offen offset:{q*1024}")
    pr.n = n_fin
    A.label(f"{name}_done")
    pr.finish(4, 5, sW, vT0, vT1, 30 << 20, nw=12)
    A.label(f"{name}_end")
    A("s_endpgm")
    return dict(name=name, nv=168, accum=168, lds=163840, block=768, grid=256)
```

```python
from asm import *
import struct
def fbits(f): return hex(struct.unpack('<I', struct.pack('<f', f))[0])

BIAS = 90.0

from k2b import Prof, maxtree, mfma

WS_YF = WS_Y

def gen_k2(A, name="attn_kernel", prof=False, var=""):
    kernel_header(A, name)
    vK, vV, vT0, vT1, vT2, vM = 1, 2, 3, 4, 5, 6
    Q = [8, 12]; KB = [16, 20]; VB = [24, 32]; P = 40
    S = [48, 64]; O = [80, 96]; M = [112, 128]
    NV = 144
    sW, sH, sQB, sTT, sKH = 20, 21, 22, 23, 16
    SRD_Q, SRD_K, SRD_V, SRD_O = 24, 28, 32, 36
    sMaskV = 40
    LDS_V, LDS_R = 65536, 131072
    LDS_X = LDS_V
    pr = Prof(A, prof)
    A("s_cmp_ge_u32 s2, 256")
    A(f"s_cbranch_scc1 {name}_end")
    pr.begin()
    A(f"s_load_dwordx2 s[4:5], s[0:1], {KA_WS}")
    A(f"s_load_dwordx4 s[48:51], s[0:1], {KA_W2}")
    A(f"s_load_dwordx2 s[46:47], s[0:1], {KA_X}")
    A(f"v_lshrrev_b32 v{vT0}, 6, v0")
    A("v_and_b32 v0, 63, v0")
    A(f"v_readfirstlane_b32 s{sW}, v{vT0}")
    A(f"s_and_b32 s{sH}, s2, 7")
    A(f"s_lshl_b32 s{sH}, s{sH}, 2")
    A("s_bfe_u32 s3, s2, 0x20003")
    A(f"s_add_u32 s{sH}, s{sH}, s3")
    A(f"s_lshr_b32 s{sQB}, s2, 5")
    A(f"v_lshlrev_b32 v{vK}, 4, v0")
    A(f"s_lshr_b32 s{sKH}, s{sW}, 2")
    A(f"s_and_b32 s17, s{sW}, 3")
    A(f"s_lshl_b32 s10, s{sKH}, 5")
    A("s_add_u32 s10, s10, s17")
    A("s_lshl_b32 s10, s10, 10")
    A(f"s_lshl_b32 s{sTT}, s{sQB}, 3")
    A("s_lshl_b32 s18, s17, 1")
    A(f"s_add_u32 s{sTT}, s{sTT}, s18")
    A(f"s_lshl_b32 s14, s{sTT}, 10")
    A(f"s_lshl_b32 s6, s{sH}, 16")
    A("s_waitcnt lgkmcnt(0)")
    pr.stamp()
    A(f"s_cmp_ge_u32 s{sW}, 8")
    A(f"s_cbranch_scc1 {name}_gemm")
    A("s_add_u32 s8, s4, s6")
    A("s_addc_u32 s9, s5, 0")
    n_gemm0 = pr.n
    srd(A, SRD_K, 8, 9, WS_K, 65536)
    srd(A, SRD_V, 8, 9, WS_V, 65536)
    srd(A, SRD_Q, 8, 9, WS_Q, 65536)
    A("s_mov_b32 m0, s10")
    A(f"s_add_u32 s12, s10, {LDS_V}")
    A(f"buffer_load_dwordx4 v{vK}, s[{SRD_K}:{SRD_K+3}], s10 offen lds")
    A(f"buffer_load_dwordx4 v[{Q[0]}:{Q[0]+3}], v{vK}, s[{SRD_Q}:{SRD_Q+3}], s14 offen")
    A(f"buffer_load_dwordx4 v[{Q[1]}:{Q[1]+3}], v{vK}, s[{SRD_Q}:{SRD_Q+3}], s14 offen offset:1024")
    A("s_mov_b32 m0, s12")
    A("s_nop 0")
    A(f"buffer_load_dwordx4 v{vK}, s[{SRD_V}:{SRD_V+3}], s10 offen lds")
    A("s_barrier")
    pr.stamp()
    srd(A, SRD_O, 4, 5, WS_ACT, ACT_SIZE)
    A(f"v_lshrrev_b32 v{vT0}, 5, v0")
    A(f"v_lshlrev_b32 v{vT0}, 8, v{vT0}")
    A(f"v_and_b32 v{vT1}, 15, v0")
    A(f"v_lshlrev_b32 v{vT1}, 4, v{vT1}")
    A(f"v_add_u32 v{vV}, v{vT0}, v{vT1}")
    A(f"s_lshl_b32 s15, s{sKH}, 15")
    A(f"s_add_u32 s11, s15, {LDS_V}")
    A(f"v_add_u32 v{vV}, s11, v{vV}")
    A(f"s_mov_b32 s{sMaskV}, 0x0000ffff")
    A(f"s_mov_b32 s{sMaskV+1}, 0x0000ffff")
    A(f"v_and_b32 v{vT0}, 27, v0")
    A(f"v_cmp_eq_u32 vcc, 16, v{vT0}")
    A(f"v_mov_b32 v{vT1}, 0x3f803f80")
    A(f"v_cndmask_b32 v{vT0}, 0, v{vT1}, vcc")
    for b in VB:
        for r in range(8):
            A(f"v_mov_b32 v{b+r}, v{vT0}")
    A("s_waitcnt vmcnt(0)")
    A("s_barrier")
    pr.stamp()
    A(f"ds_read_b128 v[{KB[0]}:{KB[0]+3}], v{vK} offset:0")
    A(f"ds_read_b128 v[{KB[1]}:{KB[1]+3}], v{vK} offset:1024")
    A(f"v_add_u32 v{vK}, s15, v{vK}")
    A("s_waitcnt lgkmcnt(1)")
    mfma(A, S[0], KB[0], Q[0], None)
    mfma(A, O[0], KB[0], Q[1], None)
    A("s_waitcnt lgkmcnt(0)")
    mfma(A, S[1], KB[1], Q[0], None)
    mfma(A, O[1], KB[1], Q[1], None)
    A(f"ds_read_b128 v[{KB[0]}:{KB[0]+3}], v{vK} offset:0")
    A(f"s_mov_b64 exec, s[{sMaskV}:{sMaskV+1}]")
    A(f"ds_read_b128 v[{VB[0]}:{VB[0]+3}], v{vV} offset:0")
    A(f"ds_read_b128 v[{VB[0]+4}:{VB[0]+7}], v{vV} offset:512")
    A("s_mov_b64 exec, -1")
    A("s_nop 7")
    A("s_nop 3")
    maxtree(A, vT0, [S[0]+r for r in range(16)] + [S[1]+r for r in range(16)])
    maxtree(A, vT1, [O[0]+r for r in range(16)] + [O[1]+r for r in range(16)])
    for t in (vT0, vT1):
        A(f"v_mov_b32 v{vT2}, v{t}")
        A("s_nop 1")
        A(f"v_permlane32_swap_b32 v{t}, v{vT2}")
        A("s_nop 1")
        A(f"v_max_f32 v{t}, v{t}, v{vT2}")
    A(f"s_mov_b32 s11, {fbits(-BIAS)}")
    A(f"v_sub_f32 v{vT0}, s11, v{vT0}")
    A(f"v_sub_f32 v{vT1}, s11, v{vT1}")
    for r in range(16):
        A(f"v_mov_b32 v{M[0]+r}, v{vT0}")
    A("s_waitcnt lgkmcnt(0)")
    A("s_nop 0")
    mfma(A, S[0], KB[0], Q[0], M[0])
    for r in range(16):
        A(f"v_mov_b32 v{M[1]+r}, v{vT1}")
    pr.stamp()
    if 'prio' in var:
        A(f"s_cmp_ge_u32 s{sW}, 4")
        A(f"s_cbranch_scc0 {name}_noprio")
        A("s_setprio 1")
        A.label(f"{name}_noprio")

    def half(q, i, off, first, last, rdK, rdV, zero=False):
        cur, oth = S[q], S[1-q]
        ex = lambda r: A(f"v_exp_f32 v{cur+r}, v{cur+r}")
        cv = lambda j: A(f"v_cvt_pk_bf16_f32 v{P+j}, v{cur+2*j}, v{cur+2*j+1}")
        vb = VB[i & 1]
        pvb = VB[i & 1] if q == 1 else VB[(i-1) & 1]
        ex(0)
        if not first: A(f"v_cvt_pk_bf16_f32 v{P+7}, v{oth+14}, v{oth+15}")
        ex(1)
        if q == 0:
            mfma(A, S[1], KB[i & 1], Q[1], M[1])
        elif not last:
            if 'nowait' not in var: A("s_waitcnt lgkmcnt(0)")
            mfma(A, S[0], KB[(i+1) & 1], Q[0], M[0])
        ex(2); cv(0)
        if q == 0 and rdK and 'noread' not in var:
            A(f"ds_read_b128 v[{KB[(i+1)&1]}:{KB[(i+1)&1]+3}], v{vK} offset:{off+1024}")
        ex(3); ex(4); cv(1)
        if not first: mfma(A, O[1-q], pvb+4, P+4, O[1-q])
        ex(5); ex(6); cv(2)
        if q == 1 and rdV and 'noread' not in var:
            vf = VB[(i+1) & 1]
            if 'noexec' not in var: A(f"s_mov_b64 exec, s[{sMaskV}:{sMaskV+1}]")
            A(f"ds_read_b128 v[{vf}:{vf+3}], v{vV} offset:{off+1024}")
            A(f"ds_read_b128 v[{vf+4}:{vf+7}], v{vV} offset:{off+1024+512}")
            if 'noexec' not in var: A("s_mov_b64 exec, -1")
        ex(7); ex(8); cv(3); ex(9)
        if q == 0 and 'nowait' not in var: A(f"s_waitcnt lgkmcnt({1 if rdK else 0})")
        ex(10)
        mfma(A, O[q], vb, P, None if zero else O[q])
        cv(4); ex(11); ex(12); cv(5); ex(13); ex(14); cv(6); ex(15)
        if q == 1 and last:
            A("s_nop 0")
            A(f"v_cvt_pk_bf16_f32 v{P+7}, v{cur+14}, v{cur+15}")
            A("s_nop 1")
            mfma(A, O[1], vb+4, P+4, O[1])
    def it(i, off, first=False, last=False):
        half(0, i, off, first, False, not last, not last, zero=first)
        half(1, i, off, False, last, not last, not last, zero=first)

    import re
    mb = re.search(r"bal(\d+)", var)
    bal = int(mb.group(1)) if mb else -1
    def maybe_prio(i):
        if i == bal:
            A(f"s_cmp_eq_u32 s{sKH}, 0")
            A(f"s_cbranch_scc1 {name}_nop{i}")
            A("s_setprio 1")
            A.label(f"{name}_nop{i}")
    it(0, 0, first=True)
    it(1, 1024)
    it(2, 2048)
    A("s_barrier")
    for i in range(3, 8):
        maybe_prio(i)
        it(i, i*1024)
    A(f"v_add_u32 v{vK}, 0x2000, v{vK}")
    A(f"v_add_u32 v{vV}, 0x2000, v{vV}")
    A("s_mov_b32 s10, 2")
    L = f"{name}_loop"
    A.raw(".p2align 6")
    A.label(L)
    for i in range(8):
        it(i, i*1024)
    A(f"v_add_u32 v{vK}, 0x2000, v{vK}")
    A(f"v_add_u32 v{vV}, 0x2000, v{vV}")
    A("s_sub_u32 s10, s10, 1")
    A("s_cmp_lg_u32 s10, 0")
    A(f"s_cbranch_scc1 {L}")
    for i in range(8):
        it(i, i*1024, last=(i == 7))
    pr.stamp()
    A("s_barrier")
    A("s_nop 7")
    A(f"s_lshl_b32 s11, s17, 1")
    A(f"s_xor_b32 s12, s{sKH}, 1")
    A("s_add_u32 s12, s11, s12")
    A(f"s_mul_i32 s12, s12, {9*256}")
    A(f"s_add_u32 s12, s12, {LDS_X}")
    A(f"s_add_u32 s13, s11, s{sKH}")
    A(f"s_mul_i32 s13, s13, {9*256}")
    A(f"s_add_u32 s13, s13, {LDS_X}")
    A(f"v_lshlrev_b32 v{vT2}, 2, v0")
    A(f"v_add_u32 v{vT0}, s12, v{vT2}")
    A(f"v_add_u32 v{vT1}, s13, v{vT2}")
    A(f"s_cmp_eq_u32 s{sKH}, 0")
    A(f"s_cbranch_scc1 {name}_k0")
    for r in range(9):
        A(f"ds_write_b32 v{vT0}, v{O[0]+r} offset:{r*256}")
    for r in range(9):
        A(f"v_mov_b32 v{O[0]+r}, v{O[1]+r}")
    for r in range(4):
        A(f"v_mov_b32 v{Q[0]+r}, v{Q[1]+r}")
    A(f"s_branch {name}_k1")
    A.label(f"{name}_k0")
    for r in range(9):
        A(f"ds_write_b32 v{vT0}, v{O[1]+r} offset:{r*256}")
    A.label(f"{name}_k1")
    A("s_waitcnt lgkmcnt(0)")
    A("s_barrier")
    for r in range(9):
        A(f"ds_read_b32 v{S[0]+r}, v{vT1} offset:{r*256}")
    A("s_waitcnt lgkmcnt(0)")
    OO = O[0]
    for r in range(9):
        A(f"v_add_f32 v{OO+r}, v{OO+r}, v{S[0]+r}")
    A(f"s_mov_b32 s10, {fbits(2.0**120)}")
    A(f"v_cmp_lt_f32 s[12:13], v{OO+8}, s10")
    A(f"v_max3_f32 v{vT0}, |v{OO}|, |v{OO+1}|, |v{OO+2}|")
    A(f"v_max3_f32 v{vT0}, v{vT0}, |v{OO+3}|, |v{OO+4}|")
    A(f"v_max3_f32 v{vT0}, v{vT0}, |v{OO+5}|, |v{OO+6}|")
    A(f"v_max_f32 v{vT0}, v{vT0}, |v{OO+7}|")
    A(f"s_mov_b32 s10, {fbits(2.0**-102)}")
    A(f"v_cmp_gt_f32 s[14:15], v{vT0}, s10")
    A("s_and_b64 s[12:13], s[12:13], s[14:15]")
    A("s_mov_b32 s10, 0x1f8")
    for r in range(8):
        A(f"v_cmp_class_f32 s[14:15], v{OO+r}, s10")
        A("s_nop 0")
        A("s_and_b64 s[12:13], s[12:13], s[14:15]")
    A("s_cmp_eq_u64 s[12:13], -1")
    if 'nocheck' in var: A(f"s_branch {name}_fin")
    A(f"s_cbranch_scc1 {name}_fin")
    A(f"v_lshlrev_b32 v{vK}, 4, v0")
    A(f"v_lshrrev_b32 v{vT0}, 5, v0")
    A(f"v_lshlrev_b32 v{vT0}, 8, v{vT0}")
    A(f"v_and_b32 v{vT1}, 15, v0")
    A(f"v_lshlrev_b32 v{vT1}, 4, v{vT1}")
    A(f"v_add_u32 v{vV}, v{vT0}, v{vT1}")
    for r in range(16):
        A(f"v_mov_b32 v{OO+r}, 0")
    A(f"v_mov_b32 v{vM}, 0xff800000")
    A("s_mov_b32 s10, 0")
    LF = f"{name}_fb"
    A.label(LF)
    A(f"buffer_load_dwordx4 v[{KB[0]}:{KB[0]+3}], v{vK}, s[{SRD_K}:{SRD_K+3}], s10 offen")
    A(f"s_mov_b64 exec, s[{sMaskV}:{sMaskV+1}]")
    A(f"buffer_load_dwordx4 v[{VB[0]}:{VB[0]+3}], v{vV}, s[{SRD_V}:{SRD_V+3}], s10 offen")
    A(f"buffer_load_dwordx4 v[{VB[0]+4}:{VB[0]+7}], v{vV}, s[{SRD_V}:{SRD_V+3}], s10 offen offset:512")
    A("s_mov_b64 exec, -1")
    A("s_waitcnt vmcnt(0)")
    cur = S[0]
    mfma(A, cur, KB[0], Q[0], None)
    A("s_nop 7")
    A("s_nop 7")
    maxtree(A, vT0, [cur+r for r in range(16)])
    A(f"v_mov_b32 v{vT1}, v{vT0}")
    A("s_nop 1")
    A(f"v_permlane32_swap_b32 v{vT0}, v{vT1}")
    A("s_nop 1")
    A(f"v_max3_f32 v{vT0}, v{vT0}, v{vT1}, v{vM}")
    A(f"v_sub_f32 v{vT1}, v{vM}, v{vT0}")
    A(f"v_exp_f32 v{vT1}, v{vT1}")
    A(f"v_mov_b32 v{vM}, v{vT0}")
    for r in range(9):
        A(f"v_mul_f32 v{OO+r}, v{OO+r}, v{vT1}")
    for r in range(16):
        A(f"v_sub_f32 v{cur+r}, v{cur+r}, v{vM}")
    for r in range(16):
        A(f"v_exp_f32 v{cur+r}, v{cur+r}")
    A("s_nop 0")
    for j in range(8):
        A(f"v_cvt_pk_bf16_f32 v{P+j}, v{cur+2*j}, v{cur+2*j+1}")
    A("s_nop 1")
    mfma(A, OO, VB[0], P, OO)
    mfma(A, OO, VB[0]+4, P+4, OO)
    A("s_nop 7")
    A("s_nop 7")
    A("s_add_u32 s10, s10, 1024")
    A("s_cmp_lt_u32 s10, 65536")
    A(f"s_cbranch_scc1 {LF}")
    A.label(f"{name}_fin")
    A(f"v_rcp_f32 v{vT0}, v{OO+8}")
    A(f"s_add_u32 s10, s{sTT}, s{sKH}")
    A(f"s_mul_i32 s10, s10, {ACT_TILE}")
    A(f"s_lshl_b32 s11, s{sH}, 10")
    for r in range(8):
        A(f"v_mul_f32 v{OO+r}, v{OO+r}, v{vT0}")
    A("s_add_u32 s10, s10, s11")
    for j in range(4):
        A(f"v_cvt_pk_bf16_f32 v{P+j}, v{OO+2*j}, v{OO+2*j+1}")
    A(f"v_lshlrev_b32 v{vT1}, 4, v0")
    A(f"buffer_store_dwordx4 v[{P}:{P+3}], v{vT1}, s[{SRD_O}:{SRD_O+3}], s10 offen")
    n_fin = pr.n
    A(f"s_branch {name}_done")
    A.label(f"{name}_gemm")
    depth, nsteps = 3, 28
    RING = depth*2048
    LDS_CNT = LDS_R + 4*RING
    SRD_ACT, SRD_W2, SRD_X, SRD_B2, SRD_Y = 24, 28, 32, 36, 56
    sG, sTB, sNB, sA0, sA1, sWs, sRing = 16, 17, 18, 19, 42, 43, 45
    gT = [1, 2, 3, 4, 5]
    vL16, vWd = 6, 7
    vWr = [8, 9]
    ACC = [16, 32, 48, 64]
    WF = [[80, 84], [88, 92]]
    AF = [[96 + 8*d, 100 + 8*d] for d in range(depth)]
    A(f"s_setprio {0 if 'gp0' in var else 1 if 'gp1' in var else 3 if 'gp3' in var else 2}")
    A(f"s_sub_u32 s{sG}, s{sW}, 8")
    A(f"s_lshr_b32 s{sTB}, s{sH}, 3")
    A(f"s_lshl_b32 s11, s{sQB}, 2")
    A(f"s_add_u32 s{sTB}, s{sTB}, s11")
    A(f"s_and_b32 s{sNB}, s{sH}, 7")
    srd(A, SRD_ACT, 4, 5, WS_ACT, ACT_SIZE)
    srd(A, SRD_W2, 48, 49, 0, 1792*1024)
    A(f"v_lshlrev_b32 v{vL16}, 4, v0")
    A(f"v_lshrrev_b32 v{gT[0]}, 3, v0")
    A(f"v_and_b32 v{gT[1]}, 7, v0")
    A(f"v_bfe_u32 v{gT[2]}, v0, 4, 1")
    A(f"v_lshlrev_b32 v{gT[2]}, 2, v{gT[2]}")
    A(f"v_xor_b32 v{gT[1]}, v{gT[1]}, v{gT[2]}")
    A(f"v_lshlrev_b32 v{gT[1]}, 4, v{gT[1]}")
    A(f"v_lshl_add_u32 v{vWd}, v{gT[0]}, 10, v{gT[1]}")
    A(f"s_mul_i32 s{sRing}, s{sG}, {RING}")
    A(f"s_add_u32 s{sRing}, s{sRing}, {LDS_R}")
    A(f"v_and_b32 v{gT[0]}, 15, v0")
    A(f"v_lshrrev_b32 v{gT[0]}, 2, v{gT[0]}")
    A(f"v_lshrrev_b32 v{gT[1]}, 5, v0")
    A(f"v_lshl_add_u32 v{gT[1]}, v{gT[1]}, 2, v{gT[0]}")
    A(f"v_lshlrev_b32 v{gT[1]}, 7, v{gT[1]}")
    A(f"v_lshrrev_b32 v{gT[0]}, 1, v{gT[0]}")
    A(f"v_lshl_add_u32 v{gT[1]}, v{gT[0]}, 6, v{gT[1]}")
    A(f"v_bfe_u32 v{gT[0]}, v0, 4, 1")
    A(f"v_lshl_add_u32 v{gT[1]}, v{gT[0]}, 5, v{gT[1]}")
    A(f"v_and_b32 v{gT[0]}, 3, v0")
    A(f"v_lshl_add_u32 v{gT[1]}, v{gT[0]}, 3, v{gT[1]}")
    A(f"s_and_b32 s11, s{sG}, 1")
    A("s_lshl_b32 s11, s11, 6")
    A(f"v_xor_b32 v{gT[1]}, s11, v{gT[1]}")
    A(f"v_add_u32 v{vWr[0]}, s{sRing}, v{gT[1]}")
    A(f"v_xor_b32 v{gT[1]}, 64, v{gT[1]}")
    A(f"v_add_u32 v{vWr[1]}, s{sRing}, v{gT[1]}")
    A(f"s_mul_i32 s{sA0}, s{sTB}, {2*ACT_TILE}")
    A(f"s_mul_i32 s11, s{sG}, {nsteps*1024}")
    A(f"s_add_u32 s{sA0}, s{sA0}, s11")
    A(f"s_add_u32 s{sA0}, s{sA0}, {32*1024}")
    A(f"s_add_u32 s{sA1}, s{sA0}, {ACT_TILE}")
    A(f"s_cmp_ge_u32 s{sG}, 2")
    A(f"s_cselect_b32 s11, s{sA1}, s{sA0}")
    A(f"s_cselect_b32 s{sA1}, s{sA0}, s{sA1}")
    A(f"s_mov_b32 s{sA0}, s11")
    A(f"s_mul_i32 s{sWs}, s{sG}, {nsteps*16*1024}")
    A(f"s_lshl_b32 s11, s{sNB}, 7")
    A(f"s_add_u32 s{sWs}, s{sWs}, s11")
    def issue(i):
        d = i % depth
        A(f"s_add_u32 m0, s{sRing}, {d*2048}")
        A(f"buffer_load_dwordx4 v[{AF[d][0]}:{AF[d][0]+3}], v{vL16}, s[{SRD_ACT}:{SRD_ACT+3}], s{sA0} offen")
        A(f"buffer_load_dwordx4 v{vWd}, s[{SRD_W2}:{SRD_W2+3}], s{sWs} offen lds")
        A(f"s_add_u32 m0, s{sRing}, {d*2048 + 1024}")
        A(f"s_add_u32 s{sWs}, s{sWs}, 8192")
        A(f"buffer_load_dwordx4 v[{AF[d][1]}:{AF[d][1]+3}], v{vL16}, s[{SRD_ACT}:{SRD_ACT+3}], s{sA1} offen")
        A(f"buffer_load_dwordx4 v{vWd}, s[{SRD_W2}:{SRD_W2+3}], s{sWs} offen lds")
        A(f"s_add_u32 s{sWs}, s{sWs}, 8192")
        A(f"s_add_u32 s{sA0}, s{sA0}, 1024")
        A(f"s_add_u32 s{sA1}, s{sA1}, 1024")
    def wreads(i):
        d = i % depth; b = i & 1
        for u in range(2):
            for t in range(2):
                A(f"ds_read_b64_tr_b16 v[{WF[b][u]+2*t}:{WF[b][u]+2*t+1}], v{vWr[u]} offset:{d*2048 + t*1024}")
    def issue_parts(i):
        d = i % depth
        return [
            [f"s_add_u32 m0, s{sRing}, {d*2048}",
             f"buffer_load_dwordx4 v[{AF[d][0]}:{AF[d][0]+3}], v{vL16}, s[{SRD_ACT}:{SRD_ACT+3}], s{sA0} offen"],
            [f"buffer_load_dwordx4 v{vWd}, s[{SRD_W2}:{SRD_W2+3}], s{sWs} offen lds",
             f"s_add_u32 m0, s{sRing}, {d*2048 + 1024}",
             f"s_add_u32 s{sWs}, s{sWs}, 8192"],
            [f"buffer_load_dwordx4 v[{AF[d][1]}:{AF[d][1]+3}], v{vL16}, s[{SRD_ACT}:{SRD_ACT+3}], s{sA1} offen",
             f"buffer_load_dwordx4 v{vWd}, s[{SRD_W2}:{SRD_W2+3}], s{sWs} offen lds"],
            [f"s_add_u32 s{sWs}, s{sWs}, 8192", f"s_add_u32 s{sA0}, s{sA0}, 1024", f"s_add_u32 s{sA1}, s{sA1}, 1024"]]
    def step(i, n_after, more):
        d = i % depth; b = i & 1
        if n_after is not None:
            A(f"s_waitcnt vmcnt({4*n_after})")
            wreads(i + 1)
            A("s_waitcnt lgkmcnt(4)")
        else:
            A("s_waitcnt lgkmcnt(0)")
        if 'nogm' in var:
            if more: issue(i)
            return
        if 'il' in var:
            parts = issue_parts(i) if more else [[], [], [], []]
            mfma(A, ACC[0], WF[b][0], AF[d][0], ACC[0])
            mfma(A, ACC[1], WF[b][1], AF[d][0], ACC[1])
            for x in parts[0] + parts[1]: A(x)
            mfma(A, ACC[2], WF[b][0], AF[d][1], ACC[2])
            mfma(A, ACC[3], WF[b][1], AF[d][1], ACC[3])
            for x in parts[2] + parts[3]: A(x)
            return
        for tt in range(2):
            for u in range(2):
                mfma(A, ACC[tt*2+u], WF[b][u], AF[d][tt], ACC[tt*2+u])
        if more: issue(i)
    A(f"s_lshl_b32 s6, s{sH}, 16")
    A("s_add_u32 s8, s4, s6")
    A("s_addc_u32 s9, s5, 0")
    SRD_KK, SRD_VV = 32, 36
    srd(A, SRD_KK, 8, 9, WS_K, 65536)
    srd(A, SRD_VV, 8, 9, WS_V, 65536)
    A(f"s_lshl_b32 s10, s{sG}, 10")
    def kv_chunk(c):
        for half in range(2):
            A(f"s_add_u32 s11, s10, {c*4096 + half*32768}")
            A("s_mov_b32 m0, s11")
            A(f"s_add_u32 s12, s11, {LDS_V}")
            A(f"buffer_load_dwordx4 v{vL16}, s[{SRD_KK}:{SRD_KK+3}], s11 offen lds")
            A("s_mov_b32 m0, s12")
            A("s_nop 0")
            A(f"buffer_load_dwordx4 v{vL16}, s[{SRD_VV}:{SRD_VV+3}], s11 offen lds")
    A(f"v_mov_b32 v{gT[0]}, 0")
    A(f"v_lshlrev_b32 v{gT[1]}, 2, v0")
    A(f"v_add_u32 v{gT[1]}, {LDS_CNT}, v{gT[1]}")
    A(f"ds_write_b32 v{gT[1]}, v{gT[0]}")
    A("s_waitcnt lgkmcnt(0)")
    A("s_barrier")
    kv_chunk(1)
    A("s_barrier")
    for c in range(2, 8): kv_chunk(c)
    for i in range(depth): issue(i)
    for t in range(4):
        for r in range(16): A(f"v_mov_b32 v{ACC[t]+r}, 0")
    A(f"s_waitcnt vmcnt({4*depth})")
    A("s_barrier")
    pr.n = n_gemm0
    pr.stamp(); pr.stamp(); pr.stamp()
    A(f"s_waitcnt vmcnt({4*(depth-1)})")
    wreads(0)
    def run_steps(i0, n, total):
        for i in range(i0, i0 + n):
            more = i + depth < total
            n_after = min(total - 1, i + depth - 1) - (i + 1) if i + 1 < total else None
            step(i, n_after, more)
    A("s_mov_b32 s10, 4")
    LG = f"{name}_gloop"
    A.label(LG)
    for i in range(6): step(i, depth - 2, True)
    A("s_sub_u32 s10, s10, 1")
    A("s_cmp_lg_u32 s10, 0")
    A(f"s_cbranch_scc1 {LG}")
    run_steps(24, 4, nsteps)
    pr.stamp()
    srd(A, SRD_X, 46, 47, 0, 2048*1024)
    srd(A, SRD_B2, 50, 51, 0, 1024)
    srd(A, SRD_Y, 4, 5, WS_YF, 2048*512*4)
    A(f"s_lshr_b32 s11, s{sG}, 1")
    A(f"s_lshl_b32 s12, s{sTB}, 1")
    A("s_add_u32 s11, s11, s12")
    A("s_lshl_b32 s11, s11, 15")
    A(f"s_and_b32 s12, s{sG}, 1")
    A("s_lshl_b32 s12, s12, 6")
    A(f"s_lshl_b32 s13, s{sNB}, 7")
    A("s_add_u32 s12, s12, s13")
    A("s_add_u32 s11, s11, s12")
    A(f"v_and_b32 v{gT[1]}, 31, v0")
    A(f"v_lshlrev_b32 v{gT[1]}, 10, v{gT[1]}")
    A(f"v_lshrrev_b32 v{gT[2]}, 5, v0")
    A(f"v_lshlrev_b32 v{gT[3]}, 3, v{gT[2]}")
    A(f"v_add_u32 v{gT[4]}, v{gT[1]}, v{gT[3]}")
    XR, BR = 96, 104
    vR2 = 112
    if 'defer' in var:
        from k1p import WS_RD
        srd(A, 60, 4, 5, WS_RD, 8192)
        A(f"s_lshr_b32 s13, s{sG}, 1")
        A(f"s_lshl_b32 s14, s{sTB}, 1")
        A("s_add_u32 s13, s13, s14")
        A("s_lshl_b32 s13, s13, 7")
        A(f"v_and_b32 v{gT[0]}, 31, v0")
        A(f"v_lshlrev_b32 v{gT[0]}, 2, v{gT[0]}")
        A(f"buffer_load_dword v{vR2}, v{gT[0]}, s[60:63], s13 offen")
    for q in range(4):
        A(f"buffer_load_dwordx2 v[{XR+2*q}:{XR+2*q+1}], v{gT[4]}, s[{SRD_X}:{SRD_X+3}], s11 offen offset:{16*q}")
        A(f"buffer_load_dwordx2 v[{BR+2*q}:{BR+2*q+1}], v{gT[3]}, s[{SRD_B2}:{SRD_B2+3}], s12 offen offset:{16*q}")
    A(f"v_add_u32 v{gT[0]}, s{sRing}, v{vL16}")
    A(f"s_lshl_b32 s13, s{sG}, 2")
    A(f"s_add_u32 s13, s13, {LDS_CNT}")
    A(f"v_mov_b32 v{gT[1]}, s13")
    A("s_nop 7")
    def spin(addr_reg, off, val):
        Ls = A.new(f"{name}_sp"); Lk = A.new(f"{name}_go")
        A.label(Ls)
        A(f"ds_read_b32 v{gT[4]}, v{addr_reg} offset:{off}")
        A("s_waitcnt lgkmcnt(0)")
        A(f"v_readfirstlane_b32 s13, v{gT[4]}")
        A(f"s_cmp_ge_u32 s13, {val}")
        A(f"s_cbranch_scc1 {Lk}")
        A("s_sleep 2")
        A(f"s_branch {Ls}")
        A.label(Lk)
    TMP = 80
    for k, (px, src, dst) in enumerate(((1, 1, 0), (1, 3, 2), (2, 2, 0)), 1):
        if k > 1: spin(gT[1], 16, k - 1)
        for q in range(4):
            A(f"ds_write_b128 v{gT[0]}, v[{ACC[src]+4*q}:{ACC[src]+4*q+3}] offset:{q*1024}")
        A(f"v_mov_b32 v{vWd}, {k}")
        A("s_waitcnt lgkmcnt(0)")
        A(f"ds_write_b32 v{gT[1]}, v{vWd}")
        A(f"s_xor_b32 s12, s{sG}, {px}")
        A("s_lshl_b32 s13, s12, 2")
        A(f"s_add_u32 s13, s13, {LDS_CNT}")
        A(f"v_mov_b32 v{gT[2]}, s13")
        A(f"s_mul_i32 s12, s12, {RING}")
        A(f"s_add_u32 s12, s12, {LDS_R}")
        A(f"v_add_u32 v{gT[3]}, s12, v{vL16}")
        spin(gT[2], 0, k)
        for q in range(4):
            A(f"ds_read_b128 v[{TMP+4*q}:{TMP+4*q+3}], v{gT[3]} offset:{q*1024}")
        A("s_waitcnt lgkmcnt(0)")
        A(f"ds_write_b32 v{gT[2]}, v{vWd} offset:16")
        for r in range(16):
            A(f"v_add_f32 v{ACC[dst]+r}, v{ACC[dst]+r}, v{TMP+r}")
    R = ACC[0]
    A("s_waitcnt vmcnt(0)")
    if 'defer' in var:
        A(f"v_mul_f32 v{vR2}, v{vR2}, v{vR2}")
        for r in range(16): A(f"v_mul_f32 v{R+r}, v{R+r}, v{vR2}")
    for q in range(4):
        for j in range(2):
            for src in (XR, BR):
                reg = src + 2*q + j
                A(f"v_lshlrev_b32 v{gT[0]}, 16, v{reg}")
                A(f"v_and_b32 v{vWd}, 0xffff0000, v{reg}")
                A(f"v_add_f32 v{R+4*q+2*j}, v{R+4*q+2*j}, v{gT[0]}")
                A(f"v_add_f32 v{R+4*q+2*j+1}, v{R+4*q+2*j+1}, v{vWd}")
    A(f"s_lshl_b32 s11, s{sTB}, 3")
    A(f"s_add_u32 s11, s11, s{sNB}")
    A("s_lshl_b32 s11, s11, 2")
    A(f"s_add_u32 s11, s11, s{sG}")
    A("s_lshl_b32 s11, s11, 12")
    for q in range(4):
        A(f"buffer_store_dwordx4 v[{R+4*q}:{R+4*q+3}], v{vL16}, s[{SRD_Y}:{SRD_Y+3}], s11 offen offset:{q*1024}")
    A("s_barrier")
    A("s_barrier")
    pr.n = n_fin
    A.label(f"{name}_done")
    pr.finish(4, 5, sW, vT0, vT1, 30 << 20, nw=12)
    A.label(f"{name}_end")
    A("s_endpgm")
    return dict(name=name, nv=168, accum=168, lds=163840, block=768, grid=256)
```

```python
from asm import *
from k2b import Prof, fbits, mfma

def gen_k3(A, name="out_kernel", prof=False, var="", n_wo=4, n_w2=14, depth=3, use_y=False):
    kernel_header(A, name)
    SRD_ACT, SRD_WO, SRD_W2, SRD_X, SRD_OUT, SRD_B2 = 16, 20, 24, 28, 32, 36
    sW, sTT, sNB = 40, 41, 42
    sA0, sA1, sWs, sRing = 43, 44, 45, 46
    vT = [1, 2, 3, 4, 5]
    vL16, vWd = 6, 7
    vWr = [8, 9]
    ACC = [16, 32, 48, 64]
    WF = [[80, 84], [88, 92]]
    AF = [[96 + 8*d, 100 + 8*d] for d in range(depth)]
    NV = 96 + 8*depth
    NV = max(NV, 128)
    pr = Prof(A, prof)
    nsteps = n_wo + n_w2
    A("s_cmp_ge_u32 s2, 256")
    A(f"s_cbranch_scc1 {name}_end")
    pr.begin()
    A(f"s_load_dwordx2 s[4:5], s[0:1], {KA_X}")
    A(f"s_load_dwordx2 s[6:7], s[0:1], {KA_WO}")
    A(f"s_load_dwordx4 s[8:11], s[0:1], {KA_W2}")
    A(f"s_load_dwordx2 s[12:13], s[0:1], {KA_OUT}")
    A(f"s_load_dwordx2 s[14:15], s[0:1], {KA_WS}")
    A(f"v_lshrrev_b32 v{vT[0]}, 6, v0")
    A("v_and_b32 v0, 63, v0")
    A(f"v_readfirstlane_b32 s{sW}, v{vT[0]}")
    A("s_and_b32 s3, s2, 7")
    A("s_lshl_b32 s3, s3, 2")
    A(f"s_bfe_u32 s{sTT}, s2, 0x20003")
    A(f"s_add_u32 s{sTT}, s{sTT}, s3")
    A(f"s_lshl_b32 s{sTT}, s{sTT}, 1")
    A(f"s_lshr_b32 s{sNB}, s2, 5")
    A(f"v_lshlrev_b32 v{vL16}, 4, v0")
    A(f"v_lshrrev_b32 v{vT[0]}, 3, v0")
    A(f"v_and_b32 v{vT[1]}, 7, v0")
    A(f"v_bfe_u32 v{vT[2]}, v0, 4, 1")
    A(f"v_lshlrev_b32 v{vT[2]}, 2, v{vT[2]}")
    A(f"v_xor_b32 v{vT[1]}, v{vT[1]}, v{vT[2]}")
    A(f"v_lshlrev_b32 v{vT[1]}, 4, v{vT[1]}")
    A(f"v_lshl_add_u32 v{vWd}, v{vT[0]}, 10, v{vT[1]}")
    A(f"s_mul_i32 s{sRing}, s{sW}, {depth*2048}")
    A(f"v_and_b32 v{vT[0]}, 15, v0")
    A(f"v_lshrrev_b32 v{vT[0]}, 2, v{vT[0]}")
    A(f"v_lshrrev_b32 v{vT[1]}, 5, v0")
    A(f"v_lshl_add_u32 v{vT[1]}, v{vT[1]}, 2, v{vT[0]}")
    A(f"v_lshlrev_b32 v{vT[1]}, 7, v{vT[1]}")
    A(f"v_lshrrev_b32 v{vT[0]}, 1, v{vT[0]}")
    A(f"v_lshl_add_u32 v{vT[1]}, v{vT[0]}, 6, v{vT[1]}")
    A(f"v_bfe_u32 v{vT[0]}, v0, 4, 1")
    A(f"v_lshl_add_u32 v{vT[1]}, v{vT[0]}, 5, v{vT[1]}")
    A(f"v_and_b32 v{vT[0]}, 3, v0")
    A(f"v_lshl_add_u32 v{vT[1]}, v{vT[0]}, 3, v{vT[1]}")
    A(f"v_add_u32 v{vWr[0]}, s{sRing}, v{vT[1]}")
    A(f"v_xor_b32 v{vWr[1]}, 64, v{vWr[0]}")
    A(f"s_mul_i32 s3, s{sTT}, {ACT_TILE}")
    A("s_waitcnt lgkmcnt(0)")
    pr.stamp()
    srd(A, SRD_ACT, 14, 15, WS_ACT, ACT_SIZE)
    srd(A, SRD_WO, 6, 7, 0, 512*1024)
    srd(A, SRD_W2, 8, 9, 0, 1792*1024)
    def setup(first):
        pass
    def src_init(kind):
        if kind == 'o':
            A(f"s_mul_i32 s{sA0}, s{sW}, {n_wo*1024}")
            A(f"s_mul_i32 s{sWs}, s{sW}, {n_wo*16*1024}")
        else:
            A(f"s_mul_i32 s{sA0}, s{sW}, {n_w2*1024}")
            A(f"s_add_u32 s{sA0}, s{sA0}, {32*1024}")
            A(f"s_mul_i32 s{sWs}, s{sW}, {n_w2*16*1024}")
        A(f"s_add_u32 s{sA0}, s{sA0}, s3")
        A(f"s_add_u32 s{sA1}, s{sA0}, {ACT_TILE}")
        A(f"s_lshl_b32 s47, s{sNB}, 7")
        A(f"s_add_u32 s{sWs}, s{sWs}, s47")
    def issue(i):
        if i == 0 and n_wo: src_init('o')
        if i == n_wo: src_init('f')
        sr = SRD_WO if i < n_wo else SRD_W2
        d = i % depth
        A(f"s_add_u32 m0, s{sRing}, {d*2048}")
        A(f"buffer_load_dwordx4 v[{AF[d][0]}:{AF[d][0]+3}], v{vL16}, s[{SRD_ACT}:{SRD_ACT+3}], s{sA0} offen")
        A(f"buffer_load_dwordx4 v{vWd}, s[{sr}:{sr+3}], s{sWs} offen lds")
        A(f"s_add_u32 m0, s{sRing}, {d*2048 + 1024}")
        A(f"s_add_u32 s{sWs}, s{sWs}, 8192")
        A(f"buffer_load_dwordx4 v[{AF[d][1]}:{AF[d][1]+3}], v{vL16}, s[{SRD_ACT}:{SRD_ACT+3}], s{sA1} offen")
        A(f"buffer_load_dwordx4 v{vWd}, s[{sr}:{sr+3}], s{sWs} offen lds")
        A(f"s_add_u32 s{sWs}, s{sWs}, 8192")
        A(f"s_add_u32 s{sA0}, s{sA0}, 1024")
        A(f"s_add_u32 s{sA1}, s{sA1}, 1024")
    def wreads(i):
        d = i % depth; b = i & 1
        for u in range(2):
            for t in range(2):
                A(f"ds_read_b64_tr_b16 v[{WF[b][u]+2*t}:{WF[b][u]+2*t+1}], v{vWr[u]} offset:{d*2048 + t*1024}")
    for i in range(min(depth, nsteps)): issue(i)
    for t in range(4):
        for r in range(16): A(f"v_mov_b32 v{ACC[t]+r}, 0")
    srd(A, SRD_X, 4, 5, 0, 2048*1024)
    srd(A, SRD_OUT, 12, 13, 0, 2048*1024)
    srd(A, SRD_B2, 10, 11, 0, 1024)
    issued = min(depth, nsteps)
    A(f"s_waitcnt vmcnt({4*(issued-1)})")
    pr.stamp()
    wreads(0)
    for i in range(nsteps):
        d = i % depth; b = i & 1
        if i + 1 < nsteps:
            out_after = issued - (i + 2)
            A(f"s_waitcnt vmcnt({4*out_after})")
            wreads(i + 1)
            A("s_waitcnt lgkmcnt(4)")
        else:
            A("s_waitcnt lgkmcnt(0)")
        for tt in range(2):
            for u in range(2):
                mfma(A, ACC[tt*2+u], WF[b][u], AF[d][tt], ACC[tt*2+u])
        if issued < nsteps:
            issue(issued); issued += 1
    pr.stamp()
    A("s_barrier")
    A(f"s_lshl_b32 s3, s{sW}, 14")
    A(f"v_add_u32 v{vT[0]}, s3, v{vL16}")
    A("s_nop 7")
    for t in range(4):
        for g in range(4):
            A(f"ds_write_b128 v{vT[0]}, v[{ACC[t]+4*g}:{ACC[t]+4*g+3}] offset:{(t*4+g)*1024}")
    A(f"s_lshr_b32 s48, s{sW}, 1")
    A(f"s_and_b32 s49, s{sW}, 1")
    A(f"s_lshr_b32 s50, s48, 1")
    A(f"s_and_b32 s51, s48, 1")
    A(f"s_add_u32 s50, s50, s{sTT}")
    A("s_lshl_b32 s50, s50, 15")
    A(f"s_lshl_b32 s52, s{sNB}, 6")
    A("s_lshl_b32 s51, s51, 5")
    A("s_add_u32 s52, s52, s51")
    A("s_lshl_b32 s51, s49, 4")
    A("s_add_u32 s52, s52, s51")
    A("s_lshl_b32 s52, s52, 1")
    A(f"v_and_b32 v{vT[1]}, 31, v0")
    A(f"v_lshlrev_b32 v{vT[1]}, 10, v{vT[1]}")
    A(f"v_lshrrev_b32 v{vT[2]}, 5, v0")
    A(f"v_lshlrev_b32 v{vT[3]}, 3, v{vT[2]}")
    A(f"v_add_u32 v{vT[4]}, v{vT[1]}, v{vT[3]}")
    A("s_add_u32 s53, s50, s52")
    XR, BR = 80, 84
    if use_y:
        srd(A, SRD_X, 14, 15, WS_Y, 2048*512*4)
        A(f"s_lshr_b32 s54, s{sTT}, 1")
        A("s_lshl_b32 s54, s54, 3")
        A(f"s_add_u32 s54, s54, s{sNB}")
        A("s_lshl_b32 s54, s54, 2")
        A("s_add_u32 s54, s54, s48")
        A("s_lshl_b32 s54, s54, 12")
        A("s_lshl_b32 s55, s49, 11")
        A("s_add_u32 s54, s54, s55")
        A(f"buffer_load_dwordx4 v[{XR}:{XR+3}], v{vL16}, s[{SRD_X}:{SRD_X+3}], s54 offen")
        A(f"buffer_load_dwordx4 v[{XR+4}:{XR+7}], v{vL16}, s[{SRD_X}:{SRD_X+3}], s54 offen offset:1024")
    else:
        A(f"buffer_load_dwordx2 v[{XR}:{XR+1}], v{vT[4]}, s[{SRD_X}:{SRD_X+3}], s53 offen")
        A(f"buffer_load_dwordx2 v[{XR+2}:{XR+3}], v{vT[4]}, s[{SRD_X}:{SRD_X+3}], s53 offen offset:16")
        A(f"buffer_load_dwordx2 v[{BR}:{BR+1}], v{vT[3]}, s[{SRD_B2}:{SRD_B2+3}], s52 offen")
        A(f"buffer_load_dwordx2 v[{BR+2}:{BR+3}], v{vT[3]}, s[{SRD_B2}:{SRD_B2+3}], s52 offen offset:16")
    A("s_waitcnt lgkmcnt(0)")
    A("s_barrier")
    A(f"s_lshl_b32 s3, s48, 12")
    A(f"s_lshl_b32 s51, s49, 11")
    A("s_add_u32 s3, s3, s51")
    A(f"v_add_u32 v{vT[0]}, s3, v{vL16}")
    R = 16
    A(f"v_add_u32 v{vWd}, 0x10000, v{vT[0]}")
    for p in range(8):
        base = vT[0] if p < 4 else vWd
        for g in range(2):
            A(f"ds_read_b128 v[{R+(p*2+g)*4}:{R+(p*2+g)*4+3}], v{base} offset:{(p&3)*16384 + g*1024}")
    for p in range(1, 8):
        A(f"s_waitcnt lgkmcnt({14 - 2*p})")
        for r in range(8):
            A(f"v_add_f32 v{R+r}, v{R+r}, v{R+p*8+r}")
    A("s_waitcnt vmcnt(0)")
    if use_y:
        for r in range(8):
            A(f"v_add_f32 v{R+r}, v{R+r}, v{XR+r}")
    else:
        for g in range(2):
            for j in range(2):
                for src in (XR, BR):
                    reg = src + 2*g + j
                    A(f"v_lshlrev_b32 v{vT[0]}, 16, v{reg}")
                    A(f"v_and_b32 v{vWd}, 0xffff0000, v{reg}")
                    A(f"v_add_f32 v{R+4*g+2*j}, v{R+4*g+2*j}, v{vT[0]}")
                    A(f"v_add_f32 v{R+4*g+2*j+1}, v{R+4*g+2*j+1}, v{vWd}")
    PK = 88
    for j in range(4):
        A(f"v_cvt_pk_bf16_f32 v{PK+j}, v{R+2*j}, v{R+2*j+1}")
    A("s_nop 1")
    A(f"v_permlane32_swap_b32 v{PK}, v{PK+2}")
    A(f"v_permlane32_swap_b32 v{PK+1}, v{PK+3}")
    A(f"v_lshlrev_b32 v{vT[3]}, 4, v{vT[2]}")
    A(f"v_add_u32 v{vT[4]}, v{vT[1]}, v{vT[3]}")
    A(f"buffer_store_dwordx4 v[{PK}:{PK+3}], v{vT[4]}, s[{SRD_OUT}:{SRD_OUT+3}], s53 offen")
    pr.finish(14, 15, sW, vT[0], vT[1], 29 << 20)
    A.label(f"{name}_end")
    A("s_endpgm")
    return dict(name=name, nv=NV, accum=NV, lds=131072, block=512, grid=256)
```

```python
import sys
from asm import *
import k1, k2, k2b, k2c, k1p, k2d
HEADER = open('parallel_sum__softmax_full_mha__dense_activation_squared_relu__prompt.s.ref').read().split("; Override launch")[0]
def build(gens):
    A = Asm()
    infos = []
    A.raw('.amdgcn_target "amdgcn-amd-amdhsa--gfx950"')
    A.raw('.text')
    for g in gens:
        infos.append(g(A))
    body = A.text()
    desc = "".join(kernel_desc(i['name'], i['nv'], i['accum']) for i in infos)
    launches = "".join(f"; @launch kernel={i['name']} grid=({i['grid']},1,1) block=({i['block']},1,1) lds={i['lds']}\n" for i in infos)
    return HEADER + launches + body + desc, infos
if __name__ == "__main__":
    out, which = sys.argv[1], sys.argv[2]
    prof = len(sys.argv) > 3 and sys.argv[3] == 'prof'
    var = sys.argv[4] if len(sys.argv) > 4 else ""
    gens = []
    for k in which.split(','):
        if k == 'k1': gens.append(lambda A: k1.gen_k1(A, prof=prof, var=var))
        if k == 'k2': gens.append(lambda A: k2b.gen_k2(A, prof=prof, var=var))
        if k.startswith('e'):
            def ge(A, nm=k):
                name = f"empty{nm[1:]}_kernel"
                kernel_header(A, name); A("s_endpgm")
                return dict(name=name, nv=8, accum=8, lds=0, block=64, grid=1)
            gens.append(ge)
        if k.startswith('m'):
            def gm(A, nm=k):
                name = f"mark{nm[1:]}_kernel"
                kernel_header(A, name)
                A(f"s_load_dwordx2 s[4:5], s[0:1], {KA_DBG}")
                A("s_waitcnt lgkmcnt(0)")
                srd(A, 8, 4, 5, 0, 256)
                A(f"v_mov_b32 v1, {int(nm[1:])}")
                A("v_mov_b32 v2, 0")
                A("buffer_store_dword v1, v2, s[8:11], 0 offen")
                A("s_endpgm")
                return dict(name=name, nv=8, accum=8, lds=0, block=64, grid=1)
            gens.append(gm)
        if k == 'rep':
            import report
            gens.append(lambda A: report.gen_report(A, [(31 << 20, 3, 4, 6), (30 << 20, 3, 5, 6), (29 << 20, 2, 3, 4)]))
        if k == 'k2c': gens.append(lambda A: k2c.gen_k2(A, prof=prof, var=var))
        if k == 'k1p': gens.append(lambda A: k1p.gen_k1(A, prof=prof, var=var))
        if k == 'k2d': gens.append(lambda A: k2d.gen_k2(A, prof=prof, var=var))
        if k == 'k3y':
            import k3
            gens.append(lambda A: k3.gen_k3(A, prof=prof, var=var, n_w2=0, use_y=True))
        if k == 'k3':
            import k3
            gens.append(lambda A: k3.gen_k3(A, prof=prof, var=var))
    txt, infos = build(gens)
    open(out, 'w').write(txt)
    print(infos)
```

```python
from asm import *
from k2b import maxtree, mfma
import struct, math, re
def fbits(f): return hex(struct.unpack('<I', struct.pack('<f', f))[0])

KNAME = "parallel_sum__softmax_full_mha__dense_activation_squared_relu__prompt_kernel"
BIAS = 90.0
QSCALE = 0.25 * math.log2(math.e)
WS_ST = 18 << 20
WS_RD = WS_ST + 32768
WS_CS = WS_RD + 8192
WS_CNT = WS_CS + 16384
CNT_QKV = 0
CNT_H = 64 * 128
CNT_O = CNT_H + 32 * 128
CNT_BYTES = CNT_O + 32 * 128
WS_END = WS_CNT + CNT_BYTES
WS_PROF = 30 << 20
DB_ROW, DB_COL = 0, 16
N_GEMM, N_ROW, N_COL = 208, 16, 26
P_X, P_WQKV, P_WO, P_W1, P_B1, P_W2, P_B2, P_OUT, P_DBG, P_WS = 64, 66, 68, 72, 74, 76, 78, 80, 82, 84
sW, sID = 86, 87
V_PROF = 167

class Prof:
    def __init__(self, A, on): self.A, self.on = A, on
    def begin(self):
        if not self.on: return
        A = self.A
        A("s_memrealtime s[88:89]"); A("s_memtime s[90:91]"); A(f"v_mov_b32 v{V_PROF}, 0"); A("s_waitcnt lgkmcnt(0)")
        A(f"v_writelane_b32 v{V_PROF}, s88, 14")
    def stamp(self, k):
        if not self.on: return
        A = self.A
        A("s_memrealtime s[92:93]"); A("s_waitcnt lgkmcnt(0)")
        A(f"v_writelane_b32 v{V_PROF}, s92, {k}")
    def finish(self, k):
        if not self.on: return
        A = self.A
        self.stamp(k)
        A("s_memtime s[92:93]"); A("s_waitcnt lgkmcnt(0)"); A("s_sub_u32 s92, s92, s90")
        A(f"v_writelane_b32 v{V_PROF}, s92, 15")
        srd(A, 4, P_WS, P_WS+1, WS_PROF, 1 << 20)
        A(f"s_lshl_b32 s10, s{sID}, 4"); A(f"s_add_u32 s10, s10, s{sW}"); A("s_lshl_b32 s10, s10, 7")
        A("v_lshlrev_b32 v1, 2, v0")
        A("s_mov_b64 exec, 0xffffffff")
        A(f"buffer_store_dword v{V_PROF}, v1, s[4:7], s10 offen")
        A("s_mov_b64 exec, -1")

def gen(A, name=KNAME, prof=False, var=""):
    kernel_header(A, name)
    pr = Prof(A, prof)
    N = name[:8]
    A("s_cmp_ge_u32 s2, 256")
    A(f"s_cbranch_scc1 {N}_end")
    A(f"s_load_dwordx4 s[{P_X}:{P_X+3}], s[0:1], {KA_X}")
    A(f"s_load_dwordx2 s[{P_WO}:{P_WO+1}], s[0:1], {KA_WO}")
    A(f"s_load_dwordx8 s[{P_W1}:{P_W1+7}], s[0:1], {KA_W1}")
    A(f"s_load_dwordx4 s[{P_OUT}:{P_OUT+3}], s[0:1], {KA_OUT}")
    A(f"s_load_dwordx2 s[{P_WS}:{P_WS+1}], s[0:1], {KA_WS}")
    A("v_lshrrev_b32 v1, 6, v0")
    A("v_and_b32 v0, 63, v0")
    A(f"v_readfirstlane_b32 s{sW}, v1")
    A(f"s_mov_b32 s{sID}, s2")
    if prof:
        A("s_waitcnt lgkmcnt(0)")
        pr.begin()
    A(f"s_cmp_ge_u32 s{sID}, {N_GEMM}")
    A(f"s_cbranch_scc1 {N}_helper")
    phase1(A, N, pr, var)
    helpers(A, N, pr, var)
    phase23(A, N, pr, var)
    A.label(f"{N}_end")
    A("s_endpgm")
    return dict(name=name, nv=168, accum=168, lds=163840, block=768, grid=256)

BUFSZ, OFF_W = 49152, 16384
def phase1(A, N, pr, var):
    SRD_X, SRD_W, SRD_WS, SRD_B1, SRD_DBG = 16, 20, 24, 28, 32
    sTH, sP, sCG, sRB = 41, 42, 43, 44
    sRow, sCol, sWstep = 45, 46, 47
    vT = [1, 2, 3, 4, 5, 6, 7]
    A(f"s_and_b32 s3, s{sID}, 7")
    A(f"s_lshr_b32 s55, s{sID}, 3")
    A("s_lshr_b32 s56, s3, 1")
    A("s_mul_i32 s56, s56, 26")
    A("s_add_u32 s56, s56, s55")
    A(f"s_lshr_b32 s{sCG}, s56, 3")
    A(f"s_and_b32 s{sRB}, s3, 1")
    A(f"s_lshl_b32 s{sRB}, s{sRB}, 3")
    A("s_and_b32 s56, s56, 7")
    A(f"s_add_u32 s{sRB}, s{sRB}, s56")
    A(f"s_cmp_ge_u32 s{sW}, 8")
    A(f"s_cbranch_scc1 {N}_loader")
    A(f"s_lshr_b32 s{sTH}, s{sW}, 2")
    A(f"s_and_b32 s{sP}, s{sW}, 3")
    vXr = [8, 9, 10, 11]; vWr = [12, 13]
    XF = [[16, 20], [24, 28]]; WF = [[32, 36], [40, 44]]
    ACC = [[48, 64], [80, 96]]
    AP = [112, 116]; BP = [120, 124]
    vRd = [128, 129]; vB1 = [130, 131]; RD = [128, 144]; vCS = [160, 161]
    PKA = [16, 32]
    A(f"v_and_b32 v{vT[0]}, 31, v0")
    A(f"s_lshl_b32 s58, s{sTH}, 6")
    A(f"v_add_u32 v{vT[0]}, s58, v{vT[0]}")
    A(f"v_lshrrev_b32 v{vT[1]}, 1, v{vT[0]}")
    A(f"v_and_b32 v{vT[1]}, 7, v{vT[1]}")
    A(f"v_lshrrev_b32 v{vT[2]}, 5, v0")
    A(f"v_xor_b32 v{vT[1]}, v{vT[1]}, v{vT[2]}")
    A(f"v_lshlrev_b32 v{vT[1]}, 4, v{vT[1]}")
    A(f"v_lshl_add_u32 v{vT[1]}, v{vT[0]}, 7, v{vT[1]}")
    for j in range(4): A(f"v_xor_b32 v{vXr[j]}, {j << 5}, v{vT[1]}")
    A(f"v_and_b32 v{vT[0]}, 15, v0")
    A(f"v_lshrrev_b32 v{vT[0]}, 2, v{vT[0]}")
    A(f"v_lshl_add_u32 v{vT[3]}, v{vT[2]}, 3, v{vT[0]}")
    A(f"v_bfe_u32 v{vT[4]}, v0, 4, 1")
    A(f"v_lshlrev_b32 v{vT[4]}, 5, v{vT[4]}")
    A(f"v_and_b32 v{vT[5]}, 3, v0")
    A(f"v_lshl_add_u32 v{vT[4]}, v{vT[5]}, 3, v{vT[4]}")
    A(f"v_lshrrev_b32 v{vT[0]}, 1, v{vT[0]}")
    A(f"v_lshl_add_u32 v{vT[4]}, v{vT[0]}, 6, v{vT[4]}")
    A(f"v_lshl_add_u32 v{vT[5]}, v{vT[3]}, 7, v{vT[4]}")
    A(f"s_lshl_b32 s58, s{sP}, 13")
    A(f"s_add_u32 s58, s58, {OFF_W}")
    A(f"v_add_u32 v{vWr[0]}, s58, v{vT[5]}")
    A(f"v_xor_b32 v{vWr[1]}, 64, v{vWr[0]}")
    for tt in range(2):
        for u in range(2):
            for r in range(16): A(f"v_mov_b32 v{ACC[tt][u]+r}, 0")
    A("s_waitcnt lgkmcnt(0)")
    srd(A, SRD_WS, P_WS, P_WS+1, 0, WS_END)
    srd(A, SRD_B1, P_B1, P_B1+1, 0, 3584)

    def advance(delta):
        for r in vXr + vWr: A(f"v_add_u32 v{r}, {delta & 0xffffffff:#x}, v{r}")
    def reads(j, buf):
        out = [f"ds_read_b128 v[{XF[buf][tt]}:{XF[buf][tt]+3}], v{vXr[j]} offset:{tt*4096}" for tt in range(2)]
        for u in range(2):
            for t in range(2):
                out.append(f"ds_read_b64_tr_b16 v[{WF[buf][u]+2*t}:{WF[buf][u]+2*t+1}], v{vWr[u]} offset:{j*2048 + t*512}")
        return out
    def compute(buf, swap, rd, extra):
        slots = [rd[0:2], rd[2:4], rd[4:6], list(extra)]
        k = 0
        for tt in range(2):
            for u in range(2):
                if swap: mfma(A, ACC[tt][u], XF[buf][tt], WF[buf][u], ACC[tt][u])
                else:    mfma(A, ACC[tt][u], WF[buf][u], XF[buf][tt], ACC[tt][u])
                for x in slots[k]: A(x)
                k += 1
    def stat_loads(kind):
        o = [f"v_and_b32 v{vT[0]}, 31, v0", f"v_lshlrev_b32 v{vT[1]}, 4, v{vT[0]}",
             f"s_lshl_b32 s58, s{sRB}, 7", f"s_lshl_b32 s59, s{sTH}, 6", "s_add_u32 s58, s58, s59",
             "s_lshl_b32 s59, s58, 4", f"s_add_u32 s59, s59, {WS_ST}"]
        for tt in range(2):
            o.append(f"buffer_load_dwordx4 v[{BP[tt]}:{BP[tt]+3}], v{vT[1]}, s[{SRD_WS}:{SRD_WS+3}], s59 offen offset:{tt*512} sc1")
        o += [f"v_lshlrev_b32 v{vT[2]}, 2, v{vT[0]}", f"s_lshl_b32 s59, s{sCG}, 8", f"s_lshl_b32 s60, s{sP}, 6",
              "s_add_u32 s59, s59, s60", "s_lshl_b32 s60, s59, 2", f"s_add_u32 s60, s60, {WS_CS}"]
        for u in range(2):
            o.append(f"buffer_load_dword v{vCS[u]}, v{vT[2]}, s[{SRD_WS}:{SRD_WS+3}], s60 offen offset:{u*128} sc1")
        if kind == 'H':
            o += [f"v_lshlrev_b32 v{vT[3]}, 1, v{vT[0]}", "s_sub_u32 s60, s59, 1536", "s_lshl_b32 s60, s60, 1"]
            for u in range(2):
                o.append(f"buffer_load_ushort v{vB1[u]}, v{vT[3]}, s[{SRD_B1}:{SRD_B1+3}], s60 offen offset:{u*64}")
        if kind == 'V':
            o += [f"v_lshrrev_b32 v{vT[3]}, 5, v0", f"v_lshlrev_b32 v{vT[3]}, 4, v{vT[3]}",
                  "s_lshl_b32 s60, s58, 2", f"s_add_u32 s60, s60, {WS_RD}"]
            for tt in range(2):
                for g in range(4):
                    o.append(f"buffer_load_dwordx4 v[{RD[tt]+4*g}:{RD[tt]+4*g+3}], v{vT[3]}, s[{SRD_WS}:{SRD_WS+3}], s60 offen offset:{tt*128 + g*32} sc1")
        return o
    def epilogue(kind):
        swap = kind == 'V'
        A("s_mov_b32 s60, -1"); A("s_mov_b32 s61, 0")
        A("s_waitcnt vmcnt(0)")
        for tt in range(2):
            if kind == 'QK': A(f"v_mov_b32 v{vRd[tt]}, v{BP[tt]+2}")
            A(f"v_mov_b32 v{BP[tt]+2}, 0")
            A(f"v_mov_b32 v{BP[tt]+3}, 0")
        for u in range(2):
            c = vCS[u]
            A(f"v_cvt_pk_bf16_f32 v{vT[0]}, v{c}, v{c}")
            A(f"v_lshlrev_b32 v{vT[0]}, 16, v{vT[0]}")
            A(f"v_sub_f32 v{vT[0]}, v{c}, v{vT[0]}")
            A(f"v_cvt_pk_bf16_f32 v{vT[0]}, v{c}, v{vT[0]}")
            A(f"v_cndmask_b32 v{AP[u]}, 0, v{vT[0]}, s[60:61]")
            if kind == 'H': A(f"v_cndmask_b32 v{AP[u]+1}, 0, v{vB1[u]}, s[60:61]")
            else:           A(f"v_mov_b32 v{AP[u]+1}, 0")
            A(f"v_mov_b32 v{AP[u]+2}, 0")
            A(f"v_mov_b32 v{AP[u]+3}, 0")
        A("s_nop 1")
        for tt in range(2):
            for u in range(2):
                if swap: mfma(A, ACC[tt][u], BP[tt], AP[u], ACC[tt][u])
                else:    mfma(A, ACC[tt][u], AP[u], BP[tt], ACC[tt][u])
        pr.stamp(4)
        A(f"v_lshlrev_b32 v{vT[6]}, 4, v0")
        A(f"s_lshl_b32 s58, s{sRB}, 2")
        A(f"s_lshl_b32 s59, s{sTH}, 1")
        A("s_add_u32 s58, s58, s59")
        A(f"s_lshl_b32 s59, s{sCG}, 4")
        A(f"s_lshl_b32 s62, s{sP}, 2")
        A("s_add_u32 s59, s59, s62")
        if kind == 'V':
            A(f"v_and_b32 v{vT[0]}, 15, v0")
            A(f"v_lshlrev_b32 v{vT[0]}, 4, v{vT[0]}")
            A(f"v_lshrrev_b32 v{vT[1]}, 5, v0")
            A(f"v_lshl_add_u32 v{vT[0]}, v{vT[1]}, 8, v{vT[0]}")
            A(f"v_bfe_u32 v{vT[1]}, v0, 4, 1")
            A(f"v_lshl_add_u32 v{vT[5]}, v{vT[1]}, 16, v{vT[0]}")
        if kind == 'QK':
            A(f"s_cmp_lt_u32 s{sCG}, 2")
            A(f"s_cselect_b32 s63, {fbits(QSCALE)}, 1.0")
            for tt in range(2): A(f"v_mul_f32 v{vRd[tt]}, s63, v{vRd[tt]}")
        A("s_nop 4")
        n = 0
        for tt in range(2):
            for u in range(2):
                acc = ACC[tt][u]; pk = PKA[n % 2]
                if kind == 'QK':
                    for h in range(2):
                        for r in range(8): A(f"v_mul_f32 v{acc+8*h+r}, v{acc+8*h+r}, v{vRd[tt]}")
                        for j in range(4): A(f"v_cvt_pk_bf16_f32 v{pk+4*h+j}, v{acc+8*h+2*j}, v{acc+8*h+2*j+1}")
                        A(f"s_add_u32 s62, s59, {2*u + h}")
                        A("s_lshl_b32 s62, s62, 16")
                        A(f"s_add_u32 s63, s58, {tt}")
                        A("s_lshl_b32 s63, s63, 10")
                        A("s_add_u32 s62, s62, s63")
                        A(f"buffer_store_dwordx4 v[{pk+4*h}:{pk+4*h+3}], v{vT[6]}, s[{SRD_WS}:{SRD_WS+3}], s62 offen sc1")
                elif kind == 'V':
                    A(f"s_add_u32 s62, s59, {2*u}")
                    A("s_lshl_b32 s62, s62, 16")
                    A(f"s_add_u32 s63, s58, {tt}")
                    A("s_lshl_b32 s63, s63, 10")
                    A("s_add_u32 s62, s62, s63")
                    for h in range(2):
                        for r in range(8): A(f"v_mul_f32 v{acc+8*h+r}, v{acc+8*h+r}, v{RD[tt]+8*h+r}")
                        for j in range(4): A(f"v_cvt_pk_bf16_f32 v{pk+4*h+j}, v{acc+8*h+2*j}, v{acc+8*h+2*j+1}")
                        A(f"buffer_store_dwordx4 v[{pk+4*h}:{pk+4*h+3}], v{vT[5]}, s[{SRD_WS}:{SRD_WS+3}], s62 offen offset:{h*512} sc1")
                else:
                    A(f"s_add_u32 s62, s58, {tt}")
                    A(f"s_mul_i32 s62, s62, {ACT_TILE}")
                    A(f"s_add_u32 s63, s59, {32 - 96 + 2*u}")
                    A("s_lshl_b32 s63, s63, 10")
                    A("s_add_u32 s62, s62, s63")
                    A(f"s_add_u32 s62, s62, {WS_ACT}")
                    for h in range(2):
                        for r in range(8): A(f"v_mul_f32 v{acc+8*h+r}, v{acc+8*h+r}, |v{acc+8*h+r}|")
                        for j in range(4): A(f"v_cvt_pk_bf16_f32 v{pk+4*h+j}, v{acc+8*h+2*j}, v{acc+8*h+2*j+1}")
                        for j in range(4): A(f"v_pk_max_i16 v{pk+4*h+j}, v{pk+4*h+j}, 0")
                        A(f"buffer_store_dwordx4 v[{pk+4*h}:{pk+4*h+3}], v{vT[6]}, s[{SRD_WS}:{SRD_WS+3}], s62 offen offset:{h*1024} sc1")
                n += 1
    def path(label, kind):
        A.label(label)
        swap = kind == 'V'
        pr.stamp(1)
        A("s_barrier")
        pr.stamp(2)
        for x in reads(0, 0): A(x)
        buf = 0
        for st in range(8):
            for j in range(4):
                A("s_waitcnt lgkmcnt(0)")
                rd, extra = [], []
                if j < 3:
                    rd = reads(j+1, buf ^ 1)
                elif st < 7:
                    A("s_barrier")
                    advance(((st+1) % 3 - st % 3) * BUFSZ)
                    rd = reads(0, buf ^ 1)
                    if st == 6: extra = stat_loads(kind)
                compute(buf, swap, rd, extra)
                buf ^= 1
        pr.stamp(3)
        epilogue(kind)
        A(f"s_branch {N}_p1done")
    A(f"s_cmp_lt_u32 s{sCG}, 4")
    A(f"s_cbranch_scc1 {N}_QK")
    A(f"s_cmp_lt_u32 s{sCG}, 6")
    A(f"s_cbranch_scc1 {N}_V")
    path(f"{N}_H", 'H')
    path(f"{N}_QK", 'QK')
    path(f"{N}_V", 'V')
    A.label(f"{N}_loader")
    sL = 41
    vXd = [8, 9]; vWd = 10; vFlag = 12
    sXo, sWo, sLx, sLw = 48, 49, 50, 51
    A(f"s_sub_u32 s{sL}, s{sW}, 8")
    A(f"s_cmp_lt_u32 s{sCG}, 6")
    A("s_mov_b32 s58, 3584")
    A("s_cselect_b32 s57, 3072, s58")
    A("s_cselect_b32 s58, 0, 6")
    A(f"s_sub_u32 s{sCol}, s{sCG}, s58")
    A(f"s_lshl_b32 s{sCol}, s{sCol}, 8")
    A(f"s_lshl_b32 s{sWstep}, s57, 3")
    A(f"v_lshrrev_b32 v{vT[0]}, 3, v0")
    A(f"v_and_b32 v{vT[1]}, 7, v0")
    A(f"v_lshrrev_b32 v{vT[2]}, 4, v0")
    A(f"v_xor_b32 v{vT[3]}, v{vT[1]}, v{vT[2]}")
    A(f"v_lshlrev_b32 v{vT[3]}, 4, v{vT[3]}")
    A(f"v_lshl_add_u32 v{vXd[0]}, v{vT[0]}, 10, v{vT[3]}")
    A(f"v_xor_b32 v{vXd[1]}, 64, v{vXd[0]}")
    A(f"v_and_b32 v{vT[3]}, 1, v{vT[2]}")
    A(f"v_lshlrev_b32 v{vT[3]}, 2, v{vT[3]}")
    A(f"v_xor_b32 v{vT[3]}, v{vT[1]}, v{vT[3]}")
    A(f"v_lshlrev_b32 v{vT[3]}, 4, v{vT[3]}")
    A(f"v_mul_lo_u32 v{vWd}, s57, v{vT[0]}")
    A(f"v_add_u32 v{vWd}, v{vWd}, v{vT[3]}")
    A(f"s_lshl_b32 s{sXo}, s{sL}, 15")
    A(f"s_lshl_b32 s58, s{sL}, 6")
    A(f"s_add_u32 s58, s58, s{sCol}")
    A(f"s_lshl_b32 s{sWo}, s58, 1")
    A(f"s_lshl_b32 s{sLx}, s{sL}, 12")
    A(f"s_lshl_b32 s{sLw}, s{sL}, 13")
    A(f"s_add_u32 s{sLw}, s{sLw}, {OFF_W}")
    A(f"s_lshl_b32 s58, s{sCG}, 1")
    A(f"s_add_u32 s58, s58, {DB_COL - 1}")
    A(f"v_add_u32 v{vFlag}, s58, v0")
    A(f"v_mov_b32 v{vT[0]}, s{sRB}")
    A("v_cmp_eq_u32 vcc, 0, v0")
    A("s_nop 1")
    A(f"v_cndmask_b32 v{vFlag}, v{vFlag}, v{vT[0]}, vcc")
    A("v_cmp_lt_u32 vcc, 2, v0")
    A("s_nop 1")
    A(f"v_cndmask_b32 v{vFlag}, v{vFlag}, 0, vcc")
    A(f"v_lshlrev_b32 v{vFlag}, 2, v{vFlag}")
    A("s_waitcnt lgkmcnt(0)")
    A(f"s_lshl_b32 s58, s{sRB}, 17")
    A(f"s_add_u32 s4, s{P_X}, s58")
    A(f"s_addc_u32 s5, s{P_X+1}, 0")
    srd(A, SRD_X, 4, 5, 0, 128*1024)
    A(f"s_cmp_lt_u32 s{sCG}, 6")
    A(f"s_cselect_b32 s{SRD_W}, s{P_WQKV}, s{P_W1}")
    A(f"s_cselect_b32 s{SRD_W+1}, s{P_WQKV+1}, s{P_W1+1}")
    A(f"s_lshl_b32 s{SRD_W+2}, s57, 9")
    A(f"s_mov_b32 s{SRD_W+3}, 0x20000")
    def stage(st):
        b = (st % 3) * BUFSZ
        for e in range(4):
            A(f"s_add_u32 m0, s{sLx}, {b + e*1024}")
            A(f"s_add_u32 s58, s{sXo}, {e*8192 + st*128}")
            A(f"buffer_load_dwordx4 v{vXd[e & 1]}, s[{SRD_X}:{SRD_X+3}], s58 offen lds")
        for r in range(8):
            A(f"s_add_u32 m0, s{sLw}, {b + r*1024}")
            A("s_nop 0")
            A(f"buffer_load_dwordx4 v{vWd}, s[{SRD_W}:{SRD_W+3}], s{sWo} offen lds")
            A(f"s_add_u32 s{sWo}, s{sWo}, s{sWstep}")
    stage(0); stage(1)
    srd(A, SRD_DBG, P_DBG, P_DBG+1, 0, 256)
    pr.stamp(1)
    A("s_waitcnt vmcnt(12)")
    A("s_barrier")
    pr.stamp(2)
    stage(2)
    for st in range(7):
        A(f"s_waitcnt vmcnt({12 if st < 6 else 0})")
        if st == 6:
            Lp, Lq = A.new(f"{N}_poll"), A.new(f"{N}_ok")
            A(f"s_cmp_lg_u32 s{sW}, 8")
            A(f"s_cbranch_scc1 {Lq}")
            A.label(Lp)
            A(f"buffer_load_dword v{vFlag+1}, v{vFlag}, s[{SRD_DBG}:{SRD_DBG+3}], 0 offen sc1")
            A("s_waitcnt vmcnt(0)")
            A(f"v_cmp_ne_u32 vcc, 0, v{vFlag+1}")
            A("s_nop 3")
            A("s_and_b32 s58, vcc_lo, 15")
            A("s_cmp_eq_u32 s58, 15")
            A(f"s_cbranch_scc1 {Lq}")
            A("s_sleep 8")
            A(f"s_branch {Lp}")
            A.label(Lq)
        A("s_barrier")
        if st + 3 < 8: stage(st + 3)
    pr.stamp(3)
    A.label(f"{N}_p1done")
    A("s_waitcnt vmcnt(0)")
    pr.stamp(5)
    A("s_barrier")
    A(f"s_cmp_lg_u32 s{sW}, 8")
    A(f"s_cbranch_scc1 {N}_phase2")
    srd(A, SRD_DBG, P_WS, P_WS+1, WS_CNT, CNT_BYTES)
    A("v_lshlrev_b32 v3, 7, v0")
    A(f"s_cmp_lt_u32 s{sCG}, 6")
    A(f"s_cbranch_scc0 {N}_sigH")
    A(f"s_and_b32 s58, s{sCG}, 1")
    A("s_lshl_b32 s58, s58, 12")
    signal_add(A, SRD_DBG, "s58", 32)
    A(f"s_branch {N}_phase2")
    A.label(f"{N}_sigH")
    A(f"s_lshl_b32 s58, s{sRB}, 8")
    A(f"s_add_u32 s58, s58, {CNT_H}")
    signal_add(A, SRD_DBG, "s58", 2)
    A(f"s_branch {N}_phase2")

def signal_add(A, sr, soff, nlanes):
    A("v_mov_b32 v2, 1")
    A(f"s_mov_b64 exec, {(1 << nlanes) - 1:#x}")
    A(f"buffer_atomic_add v2, v3, s[{sr}:{sr+3}], {soff} offen sc1")
    A("s_mov_b64 exec, -1")

def helpers(A, N, pr, var):
    SRD_X, SRD_W, SRD_WS, SRD_DBG = 16, 20, 24, 32
    sCG, sRB = 43, 44
    A.label(f"{N}_helper")
    A("s_waitcnt lgkmcnt(0)")
    A(f"s_cmp_ge_u32 s{sID}, {N_GEMM + N_ROW + N_COL}")
    A(f"s_cbranch_scc1 {N}_hwait")
    srd(A, SRD_WS, P_WS, P_WS+1, 0, WS_END)
    srd(A, SRD_DBG, P_DBG, P_DBG+1, 0, 256)
    A("v_lshlrev_b32 v1, 4, v0")
    A("v_mov_b32 v2, 0x3f803f80")
    A(f"s_cmp_ge_u32 s{sID}, {N_GEMM + N_ROW}")
    A(f"s_cbranch_scc1 {N}_colsum")
    A(f"s_sub_u32 s{sRB}, s{sID}, {N_GEMM}")
    A(f"s_cmp_ge_u32 s{sW}, 8")
    A(f"s_cbranch_scc1 {N}_rowdone")
    A(f"s_lshl_b32 s58, s{sRB}, 7")
    A(f"s_lshl_b32 s59, s{sW}, 4")
    A("s_add_u32 s58, s58, s59")
    srd(A, SRD_X, P_X, P_X+1, 0, 2048*1024)
    A("s_lshl_b32 s59, s58, 10")
    XR = 16
    for r in range(16):
        A(f"buffer_load_dwordx4 v[{XR+4*r}:{XR+4*r+3}], v1, s[{SRD_X}:{SRD_X+3}], s59 offen")
        A("s_add_u32 s59, s59, 1024")
    A(f"s_lshl_b32 s60, s{sW}, 13")
    A("v_lshlrev_b32 v3, 2, v0")
    A("v_add_u32 v3, s60, v3")
    for r in range(16):
        A(f"s_waitcnt vmcnt({15-r})")
        A("v_mov_b32 v4, 0"); A("v_mov_b32 v5, 0")
        for k in range(4):
            A(f"v_dot2_f32_bf16 v4, v{XR+4*r+k}, v2, v4")
            A(f"v_dot2_f32_bf16 v5, v{XR+4*r+k}, v{XR+4*r+k}, v5")
        A("s_nop 2")
        A(f"ds_write_b32 v3, v4 offset:{r*256}")
        A(f"ds_write_b32 v3, v5 offset:{4096 + r*256}")
    A("v_lshrrev_b32 v4, 2, v0"); A("v_lshlrev_b32 v4, 8, v4")
    A("v_and_b32 v5, 3, v0"); A("v_lshl_add_u32 v4, v5, 6, v4")
    A("v_add_u32 v4, s60, v4")
    A("s_waitcnt lgkmcnt(0)")
    for s_ in range(2):
        for k in range(4):
            A(f"ds_read_b128 v[{16+16*s_+4*k}:{16+16*s_+4*k+3}], v4 offset:{s_*4096 + k*16}")
    A("s_waitcnt lgkmcnt(0)")
    for s_ in range(2):
        b = 16 + 16*s_
        for st_ in (8, 4, 2, 1):
            for k in range(st_): A(f"v_add_f32 v{b+k}, v{b+k}, v{b+k+st_}")
    for perm in ("quad_perm:[1,0,3,2]", "quad_perm:[2,3,0,1]"):
        A("s_nop 1")
        A(f"v_add_f32_dpp v16, v16, v16 {perm} row_mask:0xf bank_mask:0xf")
        A(f"v_add_f32_dpp v32, v32, v32 {perm} row_mask:0xf bank_mask:0xf")
    m, q, t3 = 16, 32, 6
    A(f"v_mul_f32 v{m}, {fbits(1/512)}, v{m}")
    A(f"v_mul_f32 v{q}, {fbits(1/512)}, v{q}")
    A(f"v_fma_f32 v{q}, -v{m}, v{m}, v{q}")
    A(f"v_max_f32 v{q}, 0, v{q}")
    A(f"v_cvt_pk_bf16_f32 v{t3}, v{q}, v{q}")
    A(f"v_and_b32 v{t3}, 0xffff0000, v{t3}")
    A(f"v_add_f32 v{t3}, {fbits(1e-5)}, v{t3}")
    A(f"v_cvt_pk_bf16_f32 v{t3}, v{t3}, v{t3}")
    A(f"v_and_b32 v{t3}, 0xffff0000, v{t3}")
    A(f"v_sqrt_f32 v{t3}, v{t3}")
    A(f"v_sub_f32 v{m}, 0, v{m}")
    A(f"v_cvt_pk_bf16_f32 v49, v{t3}, 0")
    A(f"v_cvt_pk_bf16_f32 v48, v{m}, v{m}")
    A(f"v_lshlrev_b32 v{t3}, 16, v49")
    A(f"v_rcp_f32 v50, v{t3}")
    A("v_mov_b32 v51, 0")
    A("v_lshrrev_b32 v7, 2, v0")
    A("v_lshlrev_b32 v8, 4, v7"); A("v_lshlrev_b32 v9, 2, v7")
    A("s_lshl_b32 s59, s58, 4"); A(f"s_add_u32 s59, s59, {WS_ST}")
    A("s_lshl_b32 s60, s58, 2"); A(f"s_add_u32 s60, s60, {WS_RD}")
    A("v_and_b32 v10, 3, v0")
    A("v_cmp_eq_u32 vcc, 0, v10")
    A("s_and_saveexec_b64 s[62:63], vcc")
    A(f"buffer_store_dwordx4 v[48:51], v8, s[{SRD_WS}:{SRD_WS+3}], s59 offen sc1")
    A(f"buffer_store_dword v50, v9, s[{SRD_WS}:{SRD_WS+3}], s60 offen sc1")
    A("s_mov_b64 exec, s[62:63]")
    A(f"s_cmp_lg_u32 s58, 0")
    A(f"s_cbranch_scc1 {N}_rowdone")
    A("v_mov_b32 v12, 0"); A("v_lshlrev_b32 v13, 7, v0")
    A(f"s_mov_b32 s59, {WS_CNT}")
    A(f"buffer_store_dword v12, v13, s[{SRD_WS}:{SRD_WS+3}], s59 offen sc1")
    A(f"s_add_u32 s59, s59, 8192")
    A(f"buffer_store_dword v12, v13, s[{SRD_WS}:{SRD_WS+3}], s59 offen sc1")
    A.label(f"{N}_rowdone")
    A(f"s_lshl_b32 s58, s{sRB}, 2")
    A(f"s_branch {N}_signal")
    A.label(f"{N}_colsum")
    A(f"s_sub_u32 s{sCG}, s{sID}, {N_GEMM + N_ROW}")
    A(f"s_cmp_ge_u32 s{sW}, 8")
    A(f"s_cbranch_scc1 {N}_csbar")
    A(f"s_cmp_lt_u32 s{sCG}, 12")
    A("s_mov_b32 s58, 3584")
    A("s_cselect_b32 s57, 3072, s58")
    A(f"s_cselect_b32 s{SRD_W}, s{P_WQKV}, s{P_W1}")
    A(f"s_cselect_b32 s{SRD_W+1}, s{P_WQKV+1}, s{P_W1+1}")
    A("s_cselect_b32 s58, 0, 12")
    A(f"s_lshl_b32 s{SRD_W+2}, s57, 9")
    A(f"s_mov_b32 s{SRD_W+3}, 0x20000")
    A(f"s_sub_u32 s58, s{sCG}, s58")
    A("s_lshl_b32 s58, s58, 8")
    A("v_lshrrev_b32 v3, 4, v0")
    A("v_mul_lo_u32 v3, s57, v3")
    A("v_and_b32 v4, 15, v0")
    A("v_lshl_add_u32 v3, v4, 4, v3")
    A(f"s_mul_i32 s59, s57, s{sW}")
    A("s_lshl_b32 s59, s59, 2")
    A("s_add_u32 s58, s58, s59")
    A("s_lshl_b32 s59, s57, 5")
    for r in range(16):
        A(f"buffer_load_dwordx4 v[{16+4*r}:{16+4*r+3}], v3, s[{SRD_W}:{SRD_W+3}], s58 offen")
        A("s_add_u32 s58, s58, s59")
    A("v_mov_b32 v5, 0x00003f80"); A("v_mov_b32 v6, 0x3f800000")
    for k in range(8): A(f"v_mov_b32 v{80+k}, 0")
    for r in range(16):
        A(f"s_waitcnt vmcnt({15-r})")
        for k in range(4):
            A(f"v_dot2_f32_bf16 v{80+2*k}, v{16+4*r+k}, v5, v{80+2*k}")
            A(f"v_dot2_f32_bf16 v{81+2*k}, v{16+4*r+k}, v6, v{81+2*k}")
    A(f"s_lshl_b32 s60, s{sW}, 11")
    A("v_lshlrev_b32 v7, 5, v0")
    A("v_add_u32 v7, s60, v7")
    A("s_nop 2")
    A("ds_write_b128 v7, v[80:83]")
    A("ds_write_b128 v7, v[84:87] offset:16")
    A("s_waitcnt lgkmcnt(0)")
    A.label(f"{N}_csbar")
    A("s_barrier")
    A(f"s_cmp_ge_u32 s{sW}, 2")
    A(f"s_cbranch_scc1 {N}_csdone")
    A(f"s_lshl_b32 s60, s{sW}, 6")
    A("v_add_u32 v8, s60, v0")
    A("v_lshrrev_b32 v9, 3, v8"); A("v_lshlrev_b32 v9, 5, v9")
    A("v_and_b32 v10, 7, v8"); A("v_lshl_add_u32 v9, v10, 2, v9")
    for wv in range(8):
        for rg in range(4):
            A(f"ds_read_b32 v{16+wv*4+rg}, v9 offset:{wv*2048 + rg*512}")
    A("s_waitcnt lgkmcnt(0)")
    for st_ in (16, 8, 4, 2, 1):
        for k in range(st_): A(f"v_add_f32 v{16+k}, v{16+k}, v{16+k+st_}")
    A("v_lshlrev_b32 v8, 2, v8")
    A(f"s_lshl_b32 s60, s{sCG}, 9")
    A(f"s_add_u32 s60, s60, {WS_CS}")
    A(f"buffer_store_dword v16, v8, s[{SRD_WS}:{SRD_WS+3}], s60 offen sc1")
    A.label(f"{N}_csdone")
    A(f"s_add_u32 s58, s{sCG}, {DB_COL}")
    A("s_lshl_b32 s58, s58, 2")
    A.label(f"{N}_signal")
    A("s_waitcnt vmcnt(0)")
    A("s_barrier")
    A(f"s_cmp_lg_u32 s{sW}, 0")
    A(f"s_cbranch_scc1 {N}_hwait")
    A("v_mov_b32 v3, 0")
    signal_add(A, SRD_DBG, "s58", 1)
    A.label(f"{N}_hwait")
    A(f"s_cmp_lg_u32 s{sW}, 8")
    A(f"s_cbranch_scc1 {N}_phase2")
    srd(A, SRD_DBG, P_DBG, P_DBG+1, 0, 256)
    A("v_mov_b32 v3, 0")
    A.label(f"{N}_hw1")
    A(f"buffer_load_dword v2, v3, s[{SRD_DBG}:{SRD_DBG+3}], 0 offen sc1")
    A("s_waitcnt vmcnt(0)")
    A("v_readfirstlane_b32 s58, v2")
    A("s_nop 3")
    A("s_cmp_lg_u32 s58, 0")
    A(f"s_cbranch_scc1 {N}_phase2")
    A("s_sleep 16")
    A(f"s_branch {N}_hw1")

from kf2 import phase23
```

```python
from asm import *
from k2b import maxtree, mfma
import re

def phase23(A, N, pr, var):
    import kf
    from kf import fbits, BIAS, P_X, P_WO, P_W2, P_B2, P_OUT, P_DBG, P_WS, sW, sID, WS_RD, WS_CNT, WS_END, CNT_QKV, CNT_H, CNT_O, CNT_BYTES, signal_add
    LDS_V, LDS_R = 65536, 131072
    LDS_X = LDS_R
    sH, sQB = 21, 22
    A.label(f"{N}_phase2")
    A("s_waitcnt lgkmcnt(0)")
    pr.stamp(6)
    A(f"s_and_b32 s{sH}, s{sID}, 7")
    A(f"s_lshl_b32 s{sH}, s{sH}, 2")
    A(f"s_bfe_u32 s3, s{sID}, 0x20003")
    A(f"s_add_u32 s{sH}, s{sH}, s3")
    A(f"s_lshr_b32 s{sQB}, s{sID}, 5")
    A(f"s_lshl_b32 s6, s{sH}, 16")
    A(f"s_add_u32 s8, s{P_WS}, s6")
    A(f"s_addc_u32 s9, s{P_WS+1}, 0")
    A(f"s_cmp_ge_u32 s{sW}, 8")
    A(f"s_cbranch_scc1 {N}_gemm")
    vK, vV, vT0, vT1, vT2, vM = 1, 2, 3, 4, 5, 6
    Q = [8, 12]; KB = [16, 20]; VB = [24, 32]; P = 40
    S = [48, 64]; O = [80, 96]; M = [112, 128]
    sTT, sKH = 23, 16
    SRD_Q, SRD_K, SRD_V, SRD_O = 24, 28, 32, 36
    sMaskV = 40
    A(f"v_lshlrev_b32 v{vK}, 4, v0")
    A(f"s_lshr_b32 s{sKH}, s{sW}, 2")
    A(f"s_and_b32 s17, s{sW}, 3")
    A(f"s_lshl_b32 s10, s{sKH}, 5")
    A("s_add_u32 s10, s10, s17")
    A("s_lshl_b32 s10, s10, 10")
    A(f"s_lshl_b32 s{sTT}, s{sQB}, 3")
    A("s_lshl_b32 s18, s17, 1")
    A(f"s_add_u32 s{sTT}, s{sTT}, s18")
    A(f"s_lshl_b32 s14, s{sTT}, 10")
    srd(A, SRD_K, 8, 9, WS_K, 65536)
    srd(A, SRD_V, 8, 9, WS_V, 65536)
    srd(A, SRD_Q, 8, 9, WS_Q, 65536)
    srd(A, SRD_O, P_WS, P_WS+1, WS_ACT, ACT_SIZE)
    A(f"v_lshrrev_b32 v{vT0}, 5, v0")
    A(f"v_lshlrev_b32 v{vT0}, 8, v{vT0}")
    A(f"v_and_b32 v{vT1}, 15, v0")
    A(f"v_lshlrev_b32 v{vT1}, 4, v{vT1}")
    A(f"v_add_u32 v{vV}, v{vT0}, v{vT1}")
    A(f"s_lshl_b32 s15, s{sKH}, 15")
    A(f"s_add_u32 s11, s15, {LDS_V}")
    A(f"v_add_u32 v{vV}, s11, v{vV}")
    A(f"s_mov_b32 s{sMaskV}, 0x0000ffff")
    A(f"s_mov_b32 s{sMaskV+1}, 0x0000ffff")
    A(f"v_and_b32 v{vT0}, 27, v0")
    A(f"v_cmp_eq_u32 vcc, 16, v{vT0}")
    A(f"v_mov_b32 v{vT1}, 0x3f803f80")
    A(f"v_cndmask_b32 v{vT0}, 0, v{vT1}, vcc")
    for b in VB:
        for r in range(8): A(f"v_mov_b32 v{b+r}, v{vT0}")
    A("s_barrier")
    pr.stamp(7)
    A("s_mov_b32 m0, s10")
    A(f"s_add_u32 s12, s10, {LDS_V}")
    A(f"buffer_load_dwordx4 v{vK}, s[{SRD_K}:{SRD_K+3}], s10 offen lds")
    A(f"buffer_load_dwordx4 v[{Q[0]}:{Q[0]+3}], v{vK}, s[{SRD_Q}:{SRD_Q+3}], s14 offen")
    A(f"buffer_load_dwordx4 v[{Q[1]}:{Q[1]+3}], v{vK}, s[{SRD_Q}:{SRD_Q+3}], s14 offen offset:1024")
    A("s_mov_b32 m0, s12")
    A("s_nop 0")
    A(f"buffer_load_dwordx4 v{vK}, s[{SRD_V}:{SRD_V+3}], s10 offen lds")
    A("s_waitcnt vmcnt(0)")
    A("s_barrier")
    pr.stamp(8)
    A(f"ds_read_b128 v[{KB[0]}:{KB[0]+3}], v{vK} offset:0")
    A(f"ds_read_b128 v[{KB[1]}:{KB[1]+3}], v{vK} offset:1024")
    A(f"v_add_u32 v{vK}, s15, v{vK}")
    A("s_waitcnt lgkmcnt(1)")
    mfma(A, S[0], KB[0], Q[0], None)
    mfma(A, O[0], KB[0], Q[1], None)
    A("s_waitcnt lgkmcnt(0)")
    mfma(A, S[1], KB[1], Q[0], None)
    mfma(A, O[1], KB[1], Q[1], None)
    A(f"ds_read_b128 v[{KB[0]}:{KB[0]+3}], v{vK} offset:0")
    A(f"s_mov_b64 exec, s[{sMaskV}:{sMaskV+1}]")
    A(f"ds_read_b128 v[{VB[0]}:{VB[0]+3}], v{vV} offset:0")
    A(f"ds_read_b128 v[{VB[0]+4}:{VB[0]+7}], v{vV} offset:512")
    A("s_mov_b64 exec, -1")
    A("s_nop 7")
    A("s_nop 3")
    maxtree(A, vT0, [S[0]+r for r in range(16)] + [S[1]+r for r in range(16)])
    maxtree(A, vT1, [O[0]+r for r in range(16)] + [O[1]+r for r in range(16)])
    for t in (vT0, vT1):
        A(f"v_mov_b32 v{vT2}, v{t}")
        A("s_nop 1")
        A(f"v_permlane32_swap_b32 v{t}, v{vT2}")
        A("s_nop 1")
        A(f"v_max_f32 v{t}, v{t}, v{vT2}")
    A(f"s_mov_b32 s11, {fbits(-BIAS)}")
    A(f"v_sub_f32 v{vT0}, s11, v{vT0}")
    A(f"v_sub_f32 v{vT1}, s11, v{vT1}")
    for r in range(16): A(f"v_mov_b32 v{M[0]+r}, v{vT0}")
    A("s_waitcnt lgkmcnt(0)")
    A("s_nop 0")
    mfma(A, S[0], KB[0], Q[0], M[0])
    for r in range(16): A(f"v_mov_b32 v{M[1]+r}, v{vT1}")
    pr.stamp(9)

    def half(q, i, off, first, last, rdK, rdV, zero=False):
        cur, oth = S[q], S[1-q]
        ex = lambda r: A(f"v_exp_f32 v{cur+r}, v{cur+r}")
        cv = lambda j: A(f"v_cvt_pk_bf16_f32 v{P+j}, v{cur+2*j}, v{cur+2*j+1}")
        vb = VB[i & 1]
        pvb = VB[i & 1] if q == 1 else VB[(i-1) & 1]
        ex(0)
        if not first: A(f"v_cvt_pk_bf16_f32 v{P+7}, v{oth+14}, v{oth+15}")
        ex(1)
        if q == 0:
            mfma(A, S[1], KB[i & 1], Q[1], M[1])
        elif not last:
            A("s_waitcnt lgkmcnt(0)")
            mfma(A, S[0], KB[(i+1) & 1], Q[0], M[0])
        ex(2); cv(0)
        if q == 0 and rdK:
            A(f"ds_read_b128 v[{KB[(i+1)&1]}:{KB[(i+1)&1]+3}], v{vK} offset:{off+1024}")
        ex(3); ex(4); cv(1)
        if not first: mfma(A, O[1-q], pvb+4, P+4, O[1-q])
        ex(5); ex(6); cv(2)
        if q == 1 and rdV:
            vf = VB[(i+1) & 1]
            A(f"s_mov_b64 exec, s[{sMaskV}:{sMaskV+1}]")
            A(f"ds_read_b128 v[{vf}:{vf+3}], v{vV} offset:{off+1024}")
            A(f"ds_read_b128 v[{vf+4}:{vf+7}], v{vV} offset:{off+1024+512}")
            A("s_mov_b64 exec, -1")
        ex(7); ex(8); cv(3); ex(9)
        if q == 0: A(f"s_waitcnt lgkmcnt({1 if rdK else 0})")
        ex(10)
        mfma(A, O[q], vb, P, None if zero else O[q])
        cv(4); ex(11); ex(12); cv(5); ex(13); ex(14); cv(6); ex(15)
        if q == 1 and last:
            A("s_nop 0")
            A(f"v_cvt_pk_bf16_f32 v{P+7}, v{cur+14}, v{cur+15}")
            A("s_nop 1")
            mfma(A, O[1], vb+4, P+4, O[1])
    def it(i, off, first=False, last=False):
        half(0, i, off, first, False, not last, not last, zero=first)
        half(1, i, off, False, last, not last, not last, zero=first)
    it(0, 0, first=True)
    it(1, 1024)
    it(2, 2048)
    A("s_barrier")
    for i in range(3, 8): it(i, i*1024)
    A(f"v_add_u32 v{vK}, 0x2000, v{vK}")
    A(f"v_add_u32 v{vV}, 0x2000, v{vV}")
    A("s_mov_b32 s10, 2")
    L = f"{N}_loop"
    A.raw(".p2align 6")
    A.label(L)
    for i in range(8): it(i, i*1024)
    A(f"v_add_u32 v{vK}, 0x2000, v{vK}")
    A(f"v_add_u32 v{vV}, 0x2000, v{vV}")
    A("s_sub_u32 s10, s10, 1")
    A("s_cmp_lg_u32 s10, 0")
    A(f"s_cbranch_scc1 {L}")
    for i in range(8): it(i, i*1024, last=(i == 7))
    pr.stamp(10)
    A("s_barrier")
    A("s_nop 7")
    A(f"s_lshl_b32 s11, s17, 1")
    A(f"s_xor_b32 s12, s{sKH}, 1")
    A("s_add_u32 s12, s11, s12")
    A(f"s_mul_i32 s12, s12, {9*256}")
    A(f"s_add_u32 s12, s12, {LDS_X}")
    A(f"s_add_u32 s13, s11, s{sKH}")
    A(f"s_mul_i32 s13, s13, {9*256}")
    A(f"s_add_u32 s13, s13, {LDS_X}")
    A(f"v_lshlrev_b32 v{vT2}, 2, v0")
    A(f"v_add_u32 v{vT0}, s12, v{vT2}")
    A(f"v_add_u32 v{vT1}, s13, v{vT2}")
    A(f"s_cmp_eq_u32 s{sKH}, 0")
    A(f"s_cbranch_scc1 {N}_k0")
    for r in range(9): A(f"ds_write_b32 v{vT0}, v{O[0]+r} offset:{r*256}")
    for r in range(9): A(f"v_mov_b32 v{O[0]+r}, v{O[1]+r}")
    for r in range(4): A(f"v_mov_b32 v{Q[0]+r}, v{Q[1]+r}")
    A(f"s_branch {N}_k1")
    A.label(f"{N}_k0")
    for r in range(9): A(f"ds_write_b32 v{vT0}, v{O[1]+r} offset:{r*256}")
    A.label(f"{N}_k1")
    A("s_waitcnt lgkmcnt(0)")
    A("s_barrier")
    for r in range(9): A(f"ds_read_b32 v{S[0]+r}, v{vT1} offset:{r*256}")
    A("s_waitcnt lgkmcnt(0)")
    OO = O[0]
    for r in range(9): A(f"v_add_f32 v{OO+r}, v{OO+r}, v{S[0]+r}")
    A(f"s_mov_b32 s10, {fbits(2.0**120)}")
    A(f"v_cmp_lt_f32 s[12:13], v{OO+8}, s10")
    A(f"v_max3_f32 v{vT0}, |v{OO}|, |v{OO+1}|, |v{OO+2}|")
    A(f"v_max3_f32 v{vT0}, v{vT0}, |v{OO+3}|, |v{OO+4}|")
    A(f"v_max3_f32 v{vT0}, v{vT0}, |v{OO+5}|, |v{OO+6}|")
    A(f"v_max_f32 v{vT0}, v{vT0}, |v{OO+7}|")
    A(f"s_mov_b32 s10, {fbits(2.0**-102)}")
    A(f"v_cmp_gt_f32 s[14:15], v{vT0}, s10")
    A("s_and_b64 s[12:13], s[12:13], s[14:15]")
    A("s_mov_b32 s10, 0x1f8")
    for r in range(8):
        A(f"v_cmp_class_f32 s[14:15], v{OO+r}, s10")
        A("s_nop 0")
        A("s_and_b64 s[12:13], s[12:13], s[14:15]")
    A("s_cmp_eq_u64 s[12:13], -1")
    A(f"s_cbranch_scc1 {N}_fin")
    A(f"v_lshlrev_b32 v{vK}, 4, v0")
    A(f"v_lshrrev_b32 v{vT0}, 5, v0")
    A(f"v_lshlrev_b32 v{vT0}, 8, v{vT0}")
    A(f"v_and_b32 v{vT1}, 15, v0")
    A(f"v_lshlrev_b32 v{vT1}, 4, v{vT1}")
    A(f"v_add_u32 v{vV}, v{vT0}, v{vT1}")
    for r in range(16): A(f"v_mov_b32 v{OO+r}, 0")
    A(f"v_mov_b32 v{vM}, 0xff800000")
    A("s_mov_b32 s10, 0")
    LF = f"{N}_fb"
    A.label(LF)
    A(f"buffer_load_dwordx4 v[{KB[0]}:{KB[0]+3}], v{vK}, s[{SRD_K}:{SRD_K+3}], s10 offen")
    A(f"s_mov_b64 exec, s[{sMaskV}:{sMaskV+1}]")
    A(f"buffer_load_dwordx4 v[{VB[0]}:{VB[0]+3}], v{vV}, s[{SRD_V}:{SRD_V+3}], s10 offen")
    A(f"buffer_load_dwordx4 v[{VB[0]+4}:{VB[0]+7}], v{vV}, s[{SRD_V}:{SRD_V+3}], s10 offen offset:512")
    A("s_mov_b64 exec, -1")
    A("s_waitcnt vmcnt(0)")
    cur = S[0]
    mfma(A, cur, KB[0], Q[0], None)
    A("s_nop 7"); A("s_nop 7")
    maxtree(A, vT0, [cur+r for r in range(16)])
    A(f"v_mov_b32 v{vT1}, v{vT0}")
    A("s_nop 1")
    A(f"v_permlane32_swap_b32 v{vT0}, v{vT1}")
    A("s_nop 1")
    A(f"v_max3_f32 v{vT0}, v{vT0}, v{vT1}, v{vM}")
    A(f"v_sub_f32 v{vT1}, v{vM}, v{vT0}")
    A(f"v_exp_f32 v{vT1}, v{vT1}")
    A(f"v_mov_b32 v{vM}, v{vT0}")
    for r in range(9): A(f"v_mul_f32 v{OO+r}, v{OO+r}, v{vT1}")
    for r in range(16): A(f"v_sub_f32 v{cur+r}, v{cur+r}, v{vM}")
    for r in range(16): A(f"v_exp_f32 v{cur+r}, v{cur+r}")
    A("s_nop 0")
    for j in range(8): A(f"v_cvt_pk_bf16_f32 v{P+j}, v{cur+2*j}, v{cur+2*j+1}")
    A("s_nop 1")
    mfma(A, OO, VB[0], P, OO)
    mfma(A, OO, VB[0]+4, P+4, OO)
    A("s_nop 7"); A("s_nop 7")
    A("s_add_u32 s10, s10, 1024")
    A("s_cmp_lt_u32 s10, 65536")
    A(f"s_cbranch_scc1 {LF}")
    A.label(f"{N}_fin")
    A(f"v_rcp_f32 v{vT0}, v{OO+8}")
    A(f"s_add_u32 s10, s{sTT}, s{sKH}")
    A(f"s_mul_i32 s10, s10, {ACT_TILE}")
    A(f"s_lshl_b32 s11, s{sH}, 10")
    for r in range(8): A(f"v_mul_f32 v{OO+r}, v{OO+r}, v{vT0}")
    A("s_add_u32 s10, s10, s11")
    for j in range(4): A(f"v_cvt_pk_bf16_f32 v{P+j}, v{OO+2*j}, v{OO+2*j+1}")
    A(f"v_lshlrev_b32 v{vT1}, 4, v0")
    A(f"buffer_store_dwordx4 v[{P}:{P+3}], v{vT1}, s[{SRD_O}:{SRD_O+3}], s10 offen sc1")
    pr.stamp(11)
    A("s_waitcnt vmcnt(0)")
    A("s_barrier")
    pr.finish(12)
    A("s_endpgm")

    A.label(f"{N}_gemm")
    depth, nsteps = 3, 28
    RING = depth*2048
    LDS_CNT = LDS_R + 4*RING
    SRD_ACT, SRD_W2, SRD_KK, SRD_VV, SRD_DBG, SRD_T = 24, 28, 32, 36, 48, 52
    sG, sTB, sNB, sA0, sA1, sWs, sRing = 16, 17, 18, 19, 42, 43, 45
    gT = [1, 2, 3, 4, 5]
    vL16, vWd = 6, 7
    vWr = [8, 9]; vFl = 10
    ACC = [16, 32, 48, 64]
    WF = [[80, 84], [88, 92]]
    AF = [[96 + 8*d, 100 + 8*d] for d in range(depth)]
    A(f"s_sub_u32 s{sG}, s{sW}, 8")
    A(f"s_lshr_b32 s{sTB}, s{sH}, 3")
    A(f"s_lshl_b32 s11, s{sQB}, 2")
    A(f"s_add_u32 s{sTB}, s{sTB}, s11")
    A(f"s_and_b32 s{sNB}, s{sH}, 7")
    srd(A, SRD_DBG, P_WS, P_WS+1, WS_CNT, CNT_BYTES)
    def poll(soff, expect, nap=4):
        Lp, Lq = A.new(f"{N}_pl"), A.new(f"{N}_pk")
        A.label(Lp)
        A(f"buffer_load_dword v{gT[4]}, v{vFl}, s[{SRD_DBG}:{SRD_DBG+3}], {soff} offen sc1")
        A("s_waitcnt vmcnt(0)")
        A(f"v_readfirstlane_b32 s13, v{gT[4]}")
        A("s_nop 3")
        A(f"s_cmp_ge_u32 s13, {expect}")
        A(f"s_cbranch_scc1 {Lq}")
        A(f"s_sleep {nap}")
        A(f"s_branch {Lp}")
        A.label(Lq)
    A(f"v_mov_b32 v{vFl}, 0")
    A(f"s_cmp_lg_u32 s{sG}, 0")
    A(f"s_cbranch_scc1 {N}_nopoll")
    A(f"s_lshr_b32 s11, s{sH}, 4")
    A("s_lshl_b32 s11, s11, 5")
    A(f"s_and_b32 s12, s{sID}, 31")
    A("s_add_u32 s11, s11, s12")
    A("s_lshl_b32 s11, s11, 7")
    poll("s11", 48, 2)
    A.label(f"{N}_nopoll")
    A(f"v_mov_b32 v{gT[0]}, 0")
    A(f"v_lshlrev_b32 v{gT[1]}, 2, v0")
    A(f"v_add_u32 v{gT[1]}, {LDS_CNT}, v{gT[1]}")
    A(f"ds_write_b32 v{gT[1]}, v{gT[0]}")
    A("s_waitcnt lgkmcnt(0)")
    A("s_barrier")
    pr.stamp(7)
    srd(A, SRD_KK, 8, 9, WS_K, 65536)
    srd(A, SRD_VV, 8, 9, WS_V, 65536)
    A(f"v_lshlrev_b32 v{vL16}, 4, v0")
    A(f"s_lshl_b32 s10, s{sG}, 10")
    def kv_chunk(c):
        for half_ in range(2):
            A(f"s_add_u32 s11, s10, {c*4096 + half_*32768}")
            A("s_mov_b32 m0, s11")
            A(f"s_add_u32 s12, s11, {LDS_V}")
            A(f"buffer_load_dwordx4 v{vL16}, s[{SRD_KK}:{SRD_KK+3}], s11 offen lds")
            A("s_mov_b32 m0, s12")
            A("s_nop 0")
            A(f"buffer_load_dwordx4 v{vL16}, s[{SRD_VV}:{SRD_VV+3}], s11 offen lds")
    srd(A, SRD_ACT, P_WS, P_WS+1, WS_ACT, ACT_SIZE)
    srd(A, SRD_W2, P_W2, P_W2+1, 0, 1792*1024)
    A(f"v_lshrrev_b32 v{gT[0]}, 3, v0")
    A(f"v_and_b32 v{gT[1]}, 7, v0")
    A(f"v_bfe_u32 v{gT[2]}, v0, 4, 1")
    A(f"v_lshlrev_b32 v{gT[2]}, 2, v{gT[2]}")
    A(f"v_xor_b32 v{gT[1]}, v{gT[1]}, v{gT[2]}")
    A(f"v_lshlrev_b32 v{gT[1]}, 4, v{gT[1]}")
    A(f"v_lshl_add_u32 v{vWd}, v{gT[0]}, 10, v{gT[1]}")
    A(f"s_mul_i32 s{sRing}, s{sG}, {RING}")
    A(f"s_add_u32 s{sRing}, s{sRing}, {LDS_R}")
    A(f"v_and_b32 v{gT[0]}, 15, v0")
    A(f"v_lshrrev_b32 v{gT[0]}, 2, v{gT[0]}")
    A(f"v_lshrrev_b32 v{gT[1]}, 5, v0")
    A(f"v_lshl_add_u32 v{gT[1]}, v{gT[1]}, 2, v{gT[0]}")
    A(f"v_lshlrev_b32 v{gT[1]}, 7, v{gT[1]}")
    A(f"v_lshrrev_b32 v{gT[0]}, 1, v{gT[0]}")
    A(f"v_lshl_add_u32 v{gT[1]}, v{gT[0]}, 6, v{gT[1]}")
    A(f"v_bfe_u32 v{gT[0]}, v0, 4, 1")
    A(f"v_lshl_add_u32 v{gT[1]}, v{gT[0]}, 5, v{gT[1]}")
    A(f"v_and_b32 v{gT[0]}, 3, v0")
    A(f"v_lshl_add_u32 v{gT[1]}, v{gT[0]}, 3, v{gT[1]}")
    A(f"s_and_b32 s11, s{sG}, 1")
    A("s_lshl_b32 s11, s11, 6")
    vTr = 11
    A(f"v_xor_b32 v{vTr}, s11, v{gT[1]}")
    A(f"v_add_u32 v{vWr[0]}, s{sRing}, v{vTr}")
    A(f"v_xor_b32 v{gT[1]}, 64, v{vTr}")
    A(f"v_add_u32 v{vWr[1]}, s{sRing}, v{gT[1]}")
    A(f"s_mul_i32 s{sA0}, s{sTB}, {2*ACT_TILE}")
    A(f"s_mul_i32 s11, s{sG}, {nsteps*1024}")
    A(f"s_add_u32 s{sA0}, s{sA0}, s11")
    A(f"s_add_u32 s{sA0}, s{sA0}, {32*1024}")
    A(f"s_add_u32 s{sA1}, s{sA0}, {ACT_TILE}")
    A(f"s_cmp_ge_u32 s{sG}, 2")
    A(f"s_cselect_b32 s11, s{sA1}, s{sA0}")
    A(f"s_cselect_b32 s{sA1}, s{sA0}, s{sA1}")
    A(f"s_mov_b32 s{sA0}, s11")
    A(f"s_mul_i32 s{sWs}, s{sG}, {nsteps*16*1024}")
    A(f"s_lshl_b32 s11, s{sNB}, 7")
    A(f"s_add_u32 s{sWs}, s{sWs}, s11")
    kv_chunk(1)
    A("s_barrier")
    for c in range(2, 8): kv_chunk(c)
    for t in range(4):
        for r in range(16): A(f"v_mov_b32 v{ACC[t]+r}, 0")
    A(f"s_cmp_lg_u32 s{sG}, 0")
    A(f"s_cbranch_scc1 {N}_nopollH")
    A(f"s_lshr_b32 s11, s{sTB}, 1")
    A("s_lshl_b32 s11, s11, 1")
    A(f"s_and_b32 s12, s{sNB}, 1")
    A("s_add_u32 s11, s11, s12")
    A("s_lshl_b32 s11, s11, 7")
    A(f"s_add_u32 s11, s11, {CNT_H}")
    poll("s11", 7)
    A.label(f"{N}_nopollH")
    A("s_waitcnt vmcnt(0)")
    A("s_barrier")
    pr.stamp(8)
    def issue(i):
        d = i % depth
        A(f"s_add_u32 m0, s{sRing}, {d*2048}")
        A(f"buffer_load_dwordx4 v[{AF[d][0]}:{AF[d][0]+3}], v{vL16}, s[{SRD_ACT}:{SRD_ACT+3}], s{sA0} offen")
        A(f"buffer_load_dwordx4 v{vWd}, s[{SRD_W2}:{SRD_W2+3}], s{sWs} offen lds")
        A(f"s_add_u32 m0, s{sRing}, {d*2048 + 1024}")
        A(f"s_add_u32 s{sWs}, s{sWs}, 8192")
        A(f"buffer_load_dwordx4 v[{AF[d][1]}:{AF[d][1]+3}], v{vL16}, s[{SRD_ACT}:{SRD_ACT+3}], s{sA1} offen")
        A(f"buffer_load_dwordx4 v{vWd}, s[{SRD_W2}:{SRD_W2+3}], s{sWs} offen lds")
        A(f"s_add_u32 s{sWs}, s{sWs}, 8192")
        A(f"s_add_u32 s{sA0}, s{sA0}, 1024")
        A(f"s_add_u32 s{sA1}, s{sA1}, 1024")
    def wreads(i):
        d = i % depth; b = i & 1
        for u in range(2):
            for t in range(2):
                A(f"ds_read_b64_tr_b16 v[{WF[b][u]+2*t}:{WF[b][u]+2*t+1}], v{vWr[u]} offset:{d*2048 + t*1024}")
    def step(i, n_after, more):
        d = i % depth; b = i & 1
        if n_after is not None:
            A(f"s_waitcnt vmcnt({4*n_after})")
            wreads(i + 1)
            A("s_waitcnt lgkmcnt(4)")
        else:
            A("s_waitcnt lgkmcnt(0)")
        for tt in range(2):
            for u in range(2):
                mfma(A, ACC[tt*2+u], WF[b][u], AF[d][tt], ACC[tt*2+u])
        if more: issue(i)
    for i in range(depth): issue(i)
    A(f"s_waitcnt vmcnt({4*(depth-1)})")
    wreads(0)
    A("s_mov_b32 s10, 4")
    LG = f"{N}_gloop"
    A.label(LG)
    for i in range(6): step(i, depth - 2, True)
    A("s_sub_u32 s10, s10, 1")
    A("s_cmp_lg_u32 s10, 0")
    A(f"s_cbranch_scc1 {LG}")
    for i in range(24, 28):
        step(i, (min(nsteps - 1, i + depth - 1) - (i + 1)) if i + 1 < nsteps else None, i + depth < nsteps)
    pr.stamp(9)
    SRD_X, SRD_B2, SRD_RD = 32, 36, 56
    srd(A, SRD_X, P_X, P_X+1, 0, 2048*1024)
    srd(A, SRD_B2, P_B2, P_B2+1, 0, 1024)
    srd(A, SRD_RD, P_WS, P_WS+1, WS_RD, 8192)
    sTok, sFeat, sOut = 46, 47, 44
    A(f"s_lshr_b32 s11, s{sG}, 1")
    A(f"s_lshl_b32 s12, s{sTB}, 1")
    A(f"s_add_u32 s{sTok}, s11, s12")
    A(f"s_and_b32 s12, s{sG}, 1")
    A("s_lshl_b32 s12, s12, 6")
    A(f"s_lshl_b32 s13, s{sNB}, 7")
    A(f"s_add_u32 s{sFeat}, s12, s13")
    A(f"s_lshl_b32 s{sOut}, s{sTok}, 15")
    A(f"s_add_u32 s{sOut}, s{sOut}, s{sFeat}")
    vRow = 12
    A(f"v_and_b32 v{vRow}, 31, v0")
    A(f"v_lshlrev_b32 v{gT[0]}, 2, v{vRow}")
    A(f"v_lshlrev_b32 v{vRow}, 10, v{vRow}")
    A(f"v_lshrrev_b32 v{gT[2]}, 5, v0")
    A(f"v_lshlrev_b32 v{gT[3]}, 3, v{gT[2]}")
    A(f"v_add_u32 v{gT[4]}, v{vRow}, v{gT[3]}")
    XR, BR, vR2 = 96, 104, 112
    A(f"s_lshl_b32 s13, s{sTok}, 7")
    A(f"buffer_load_dword v{vR2}, v{gT[0]}, s[{SRD_RD}:{SRD_RD+3}], s13 offen")
    for q in range(4):
        A(f"buffer_load_dwordx2 v[{XR+2*q}:{XR+2*q+1}], v{gT[4]}, s[{SRD_X}:{SRD_X+3}], s{sOut} offen offset:{16*q}")
        A(f"buffer_load_dwordx2 v[{BR+2*q}:{BR+2*q+1}], v{gT[3]}, s[{SRD_B2}:{SRD_B2+3}], s{sFeat} offen offset:{16*q}")
    A(f"v_add_u32 v{gT[0]}, s{sRing}, v{vL16}")
    A(f"s_lshl_b32 s13, s{sG}, 2")
    A(f"s_add_u32 s13, s13, {LDS_CNT}")
    A(f"v_mov_b32 v{gT[1]}, s13")
    A("s_nop 7")
    def spin(addr_reg, off, val):
        Ls = A.new(f"{N}_sp"); Lk = A.new(f"{N}_go")
        A.label(Ls)
        A(f"ds_read_b32 v{vFl}, v{addr_reg} offset:{off}")
        A("s_waitcnt lgkmcnt(0)")
        A(f"v_readfirstlane_b32 s13, v{vFl}")
        A("s_nop 3")
        A(f"s_cmp_ge_u32 s13, {val}")
        A(f"s_cbranch_scc1 {Lk}")
        A("s_sleep 2")
        A(f"s_branch {Ls}")
        A.label(Lk)
    TMP = 80
    for k, (px, src, dst) in enumerate(((1, 1, 0), (1, 3, 2), (2, 2, 0)), 1):
        if k > 1: spin(gT[1], 16, k - 1)
        for q in range(4):
            A(f"ds_write_b128 v{gT[0]}, v[{ACC[src]+4*q}:{ACC[src]+4*q+3}] offset:{q*1024}")
        A(f"v_mov_b32 v{vWd}, {k}")
        A("s_waitcnt lgkmcnt(0)")
        A(f"ds_write_b32 v{gT[1]}, v{vWd}")
        A(f"s_xor_b32 s12, s{sG}, {px}")
        A("s_lshl_b32 s13, s12, 2")
        A(f"s_add_u32 s13, s13, {LDS_CNT}")
        A(f"v_mov_b32 v{gT[2]}, s13")
        A(f"s_mul_i32 s12, s12, {RING}")
        A(f"s_add_u32 s12, s12, {LDS_R}")
        A(f"v_add_u32 v{gT[3]}, s12, v{vL16}")
        spin(gT[2], 0, k)
        for q in range(4):
            A(f"ds_read_b128 v[{TMP+4*q}:{TMP+4*q+3}], v{gT[3]} offset:{q*1024}")
        A("s_waitcnt lgkmcnt(0)")
        A(f"ds_write_b32 v{gT[2]}, v{vWd} offset:16")
        for r in range(16): A(f"v_add_f32 v{ACC[dst]+r}, v{ACC[dst]+r}, v{TMP+r}")
    R = ACC[0]
    A("s_waitcnt vmcnt(0)")
    A(f"v_mul_f32 v{vR2}, v{vR2}, v{vR2}")
    for r in range(16): A(f"v_mul_f32 v{R+r}, v{R+r}, v{vR2}")
    for q in range(4):
        for j in range(2):
            for src in (XR, BR):
                reg = src + 2*q + j
                A(f"v_lshlrev_b32 v{gT[0]}, 16, v{reg}")
                A(f"v_and_b32 v{vWd}, 0xffff0000, v{reg}")
                A(f"v_add_f32 v{R+4*q+2*j}, v{R+4*q+2*j}, v{gT[0]}")
                A(f"v_add_f32 v{R+4*q+2*j+1}, v{R+4*q+2*j+1}, v{vWd}")
    A(f"s_lshl_b32 s13, s{sG}, 2")
    A(f"s_add_u32 s13, s13, {LDS_CNT}")
    A(f"v_mov_b32 v{gT[1]}, s13")
    spin(gT[1], 16, 3)
    SRD_WO, SRD_OUT = 28, 32
    srd(A, SRD_WO, P_WO, P_WO+1, 0, 512*1024)
    srd(A, SRD_OUT, P_OUT, P_OUT+1, 0, 2048*1024)
    A(f"v_lshrrev_b32 v{gT[0]}, 3, v0")
    A(f"v_and_b32 v{gT[1]}, 7, v0")
    A(f"v_bfe_u32 v{gT[2]}, v0, 4, 1")
    A(f"v_lshlrev_b32 v{gT[2]}, 2, v{gT[2]}")
    A(f"v_xor_b32 v{gT[1]}, v{gT[1]}, v{gT[2]}")
    A(f"v_lshlrev_b32 v{gT[1]}, 4, v{gT[1]}")
    A(f"v_lshl_add_u32 v{vWd}, v{gT[0]}, 10, v{gT[1]}")
    pr.stamp(10)
    A("s_barrier")
    A("s_barrier")
    A("s_barrier")
    pr.stamp(11)
    A(f"s_cmp_lg_u32 s{sG}, 0")
    A(f"s_cbranch_scc1 {N}_wofetch")
    A(f"s_lshl_b32 s14, s{sQB}, 9")
    A(f"s_add_u32 s14, s14, {CNT_O}")
    A("v_lshlrev_b32 v3, 7, v0")
    signal_add(A, SRD_DBG, "s14", 4)
    A(f"s_and_b32 s12, s{sH}, 3")
    A("s_lshl_b32 s12, s12, 7")
    A("s_add_u32 s14, s14, s12")
    A(f"v_mov_b32 v{vFl}, 0")
    poll("s14", 32, 1)
    A(f"s_branch {N}_nosig")
    A.label(f"{N}_wofetch")
    A(f"s_sub_u32 s10, s{sG}, 1")
    A("s_mul_i32 s10, s10, 21")
    A(f"s_cmp_gt_u32 s{sG}, 1")
    A("s_addc_u32 s10, s10, 0")
    A("s_lshl_b32 s11, s10, 13")
    A(f"s_lshl_b32 s12, s{sNB}, 7")
    A("s_add_u32 s11, s11, s12")
    A("s_lshl_b32 s10, s10, 10")
    for i in range(22):
        if i == 21:
            A(f"s_cmp_lg_u32 s{sG}, 1")
            A(f"s_cbranch_scc1 {N}_nosig")
        A(f"s_add_u32 m0, s10, {i*1024}")
        A("s_nop 0")
        A(f"buffer_load_dwordx4 v{vWd}, s[{SRD_WO}:{SRD_WO+3}], s11 offen lds")
        A("s_add_u32 s11, s11, 8192")
    A.label(f"{N}_nosig")
    A("s_waitcnt vmcnt(0)")
    A("s_barrier")
    pr.stamp(12)
    A(f"s_mul_i32 s10, s{sTB}, {2*ACT_TILE}")
    A(f"s_lshl_b32 s11, s{sG}, 11")
    A("s_add_u32 s10, s10, s11")
    A(f"s_add_u32 s11, s11, {LDS_V}")
    for c in range(4):
        for tt in range(2):
            for e in range(2):
                A(f"s_add_u32 m0, s11, {tt*32768 + c*8192 + e*1024}")
                A(f"s_add_u32 s12, s10, {tt*ACT_TILE + c*8192 + e*1024}")
                A(f"buffer_load_dwordx4 v{vL16}, s[{SRD_ACT}:{SRD_ACT+3}], s12 offen lds")
    A(f"s_lshr_b32 s11, s{sG}, 1")
    A("s_lshl_b32 s11, s11, 15")
    A(f"s_add_u32 s11, s11, {LDS_V}")
    vOr = gT[0]
    A(f"v_add_u32 v{vOr}, s11, v{vL16}")
    OF = [96, 100]; W3 = [104, 108]
    def rd3(s_, b):
        A(f"ds_read_b128 v[{OF[b]}:{OF[b]+3}], v{vOr} offset:{s_*1024}")
        for t in range(2):
            A(f"ds_read_b64_tr_b16 v[{W3[b]+2*t}:{W3[b]+2*t+1}], v{vTr} offset:{s_*2048 + t*1024}")
    for c in range(4):
        A(f"s_waitcnt vmcnt({12 - 4*c})")
        A("s_barrier")
        rd3(8*c, 0)
        for k in range(8):
            s_ = 8*c + k; b = k & 1
            if k < 7:
                rd3(s_ + 1, b ^ 1)
                A("s_waitcnt lgkmcnt(3)")
            else:
                A("s_waitcnt lgkmcnt(0)")
            mfma(A, R, W3[b], OF[b], R)
    pr.stamp(13)
    PK = 80
    A("s_nop 7"); A("s_nop 3")
    for j in range(8): A(f"v_cvt_pk_bf16_f32 v{PK+j}, v{R+2*j}, v{R+2*j+1}")
    A("s_nop 1")
    for h in range(2):
        A(f"v_permlane32_swap_b32 v{PK+4*h}, v{PK+4*h+2}")
        A(f"v_permlane32_swap_b32 v{PK+4*h+1}, v{PK+4*h+3}")
    A(f"v_lshrrev_b32 v{gT[2]}, 5, v0")
    A(f"v_lshlrev_b32 v{gT[3]}, 4, v{gT[2]}")
    A(f"v_add_u32 v{gT[4]}, v{vRow}, v{gT[3]}")
    for h in range(2):
        A(f"buffer_store_dwordx4 v[{PK+4*h}:{PK+4*h+3}], v{gT[4]}, s[{SRD_OUT}:{SRD_OUT+3}], s{sOut} offen offset:{32*h}")
    pr.finish(0)
```

```python
import sys
from asm import *
import k1, k2, k2b, k2c, k1p, k2d
HEADER = open('parallel_sum__softmax_full_mha__dense_activation_squared_relu__prompt.s.ref').read().split("; Override launch")[0]
def build(gens):
    A = Asm()
    infos = []
    A.raw('.amdgcn_target "amdgcn-amd-amdhsa--gfx950"')
    A.raw('.text')
    for g in gens:
        infos.append(g(A))
    body = A.text()
    desc = "".join(kernel_desc(i['name'], i['nv'], i['accum']) for i in infos)
    if len(infos) == 1 and infos[0]['name'].startswith('parallel_sum'):
        i = infos[0]
        launches = f"; @launch grid=({i['grid']},1,1) block=({i['block']},1,1) lds={i['lds']}\n"
    else:
        launches = "".join(f"; @launch kernel={i['name']} grid=({i['grid']},1,1) block=({i['block']},1,1) lds={i['lds']}\n" for i in infos)
    return HEADER + launches + body + desc, infos
if __name__ == "__main__":
    out, which = sys.argv[1], sys.argv[2]
    prof = len(sys.argv) > 3 and sys.argv[3] == 'prof'
    var = sys.argv[4] if len(sys.argv) > 4 else ""
    gens = []
    for k in which.split(','):
        if k == 'k1': gens.append(lambda A: k1.gen_k1(A, prof=prof, var=var))
        if k == 'k2': gens.append(lambda A: k2b.gen_k2(A, prof=prof, var=var))
        if k.startswith('e'):
            def ge(A, nm=k):
                name = f"empty{nm[1:]}_kernel"
                kernel_header(A, name); A("s_endpgm")
                return dict(name=name, nv=8, accum=8, lds=0, block=64, grid=1)
            gens.append(ge)
        if k.startswith('m'):
            def gm(A, nm=k):
                name = f"mark{nm[1:]}_kernel"
                kernel_header(A, name)
                A(f"s_load_dwordx2 s[4:5], s[0:1], {KA_DBG}")
                A("s_waitcnt lgkmcnt(0)")
                srd(A, 8, 4, 5, 0, 256)
                A(f"v_mov_b32 v1, {int(nm[1:])}")
                A("v_mov_b32 v2, 0")
                A("buffer_store_dword v1, v2, s[8:11], 0 offen")
                A("s_endpgm")
                return dict(name=name, nv=8, accum=8, lds=0, block=64, grid=1)
            gens.append(gm)
        if k == 'rep':
            import report
            gens.append(lambda A: report.gen_report(A, [(31 << 20, 3, 4, 6), (30 << 20, 3, 5, 6), (29 << 20, 2, 3, 4)]))
        if k == 'k2c': gens.append(lambda A: k2c.gen_k2(A, prof=prof, var=var))
        if k == 'k1p': gens.append(lambda A: k1p.gen_k1(A, prof=prof, var=var))
        if k == 'k2d': gens.append(lambda A: k2d.gen_k2(A, prof=prof, var=var))
        if k == 'kf':
            import kf
            gens.append(lambda A: kf.gen(A, prof=prof, var=var))
        if k == 'k3y':
            import k3
            gens.append(lambda A: k3.gen_k3(A, prof=prof, var=var, n_w2=0, use_y=True))
        if k == 'k3':
            import k3
            gens.append(lambda A: k3.gen_k3(A, prof=prof, var=var))
    txt, infos = build(gens)
    open(out, 'w').write(txt)
    print(infos)
```
